```python
import torch

def _softmax(x, axis=-1):
    return torch.softmax(x, dim=axis)
def _gelu(x):
    return torch.nn.functional.gelu(x, approximate="tanh")
def _silu(x):
    return torch.nn.functional.silu(x)
def _sigmoid(x):
    return torch.sigmoid(x)
def _layernorm(x, axis=-1, eps=1e-5):
    m = x.mean(dim=axis, keepdim=True)
    v = x.var(dim=axis, keepdim=True, unbiased=False)
    return (x - m) / torch.sqrt(v + eps)
def _scatter_add(tgt, idx, src, axis=0):
    return tgt.clone().index_add_(axis, idx, src)
def _segment_sum(src, seg, n):
    out = torch.zeros((n,) + src.shape[1:], dtype=src.dtype)
    return out.index_add_(0, seg, src)
def _pad(x, pw):
    flat = tuple(v for pair in reversed(pw) for v in pair)
    return torch.nn.functional.pad(x, flat)

kernel_name = 'sequential_preLN__sliding_block_cached__mixer_token_mlp__decode'

def setup_inputs():

    _w = (lambda a: (lambda t: t.to(torch.bfloat16) if t.is_floating_point() else t)(torch.as_tensor(a)))
    def _A_setup():
        B, Sq, D = 1, 1, 640
        Hq, Hkv, Sk, Dh = 32, 32, 32768, 192
        assert Hq % Hkv == 0, (Hq, Hkv)
        return {
            "x": _w((lambda *s: torch.randn(*s, dtype=torch.bfloat16) * 0.05)(B, Sq, D)),
            "k_cache": _w((lambda *s: torch.randn(*s, dtype=torch.bfloat16) * 1.6)(B, Hkv, Sk, Dh)),
            "v_cache": _w((lambda *s: torch.randn(*s, dtype=torch.bfloat16) * 0.4)(B, Hkv, Sk, Dh)),
            "wq": _w((lambda *s: torch.randn(*s, dtype=torch.bfloat16) * 1.6)(D, Hq * Dh) * (D ** -0.5)),
            "wo": _w((lambda *s: torch.randn(*s, dtype=torch.bfloat16) * 0.4)(Hq * Dh, D) * ((Hq * Dh) ** -0.5)),
        }
    _A_in = _A_setup()

    def _B_setup():
        B, S, D, F = 1, 1, 640, 1536
        return {
            "x": _w((lambda *s: torch.randn(*s, dtype=torch.bfloat16) * 0.05)(B, S, D)),
            "w1": _w((lambda *s: torch.randn(*s, dtype=torch.bfloat16) * 3.2)(S, F) * (S ** -0.5)),
            "b1": _w((lambda *s: torch.randn(*s, dtype=torch.bfloat16) * 1.6)(F) * 0.02),
            "w2": _w((lambda *s: torch.randn(*s, dtype=torch.bfloat16) * 1.6)(F, S) * (F ** -0.5)),
            "b2": _w((lambda *s: torch.randn(*s, dtype=torch.bfloat16) * 1.6)(S) * 0.02),
        }
    _B_in = _B_setup()

    return {
        "A_x": _A_in["x"],
        "A_k_cache": _A_in["k_cache"],
        "A_v_cache": _A_in["v_cache"],
        "A_wq": _A_in["wq"],
        "A_wo": _A_in["wo"],
        "B_x": _B_in["x"],
        "B_w1": _B_in["w1"],
        "B_b1": _B_in["b1"],
        "B_w2": _B_in["w2"],
        "B_b2": _B_in["b2"],
    }

def reference(A_x, A_k_cache, A_v_cache, A_wq, A_wo, B_x, B_w1, B_b1, B_w2, B_b2):
    def _A_ref(x, k_cache, v_cache, wq, wo):
        B, Sq, D = x.shape
        Hq, Dh = 32, 192
        Hkv, Sk = k_cache.shape[1], k_cache.shape[2]
        W = min(4096, max(256, Sk // 4))
        rep = Hq // Hkv
        q = (lambda x, *d: x.permute(*d))((x @ wq).reshape(B, Sq, Hq, Dh), 0, 2, 1, 3)
        k = (lambda x, n, axis: torch.repeat_interleave(x, n, dim=axis))(k_cache[:, :, Sk - W:, :], rep, axis=1)
        v = (lambda x, n, axis: torch.repeat_interleave(x, n, dim=axis))(v_cache[:, :, Sk - W:, :], rep, axis=1)
        scores = torch.einsum("bhqd,bhkd->bhqk", q, k) * (Dh ** -0.5)
        p = _softmax(scores, axis=-1)
        o = torch.einsum("bhqk,bhkd->bhqd", p, v)
        return (lambda x, *d: x.permute(*d))(o, 0, 2, 1, 3).reshape(B, Sq, Hq * Dh) @ wo

    def _B_ref(x, w1, b1, w2, b2):
        B, S, D = x.shape
        h = _layernorm(x, axis=-1)
        u = torch.einsum("bsd,sf->bdf", h, w1) + b1
        u = _gelu(u)
        y = torch.einsum("bdf,fs->bds", u, w2) + b2
        return (lambda x, *d: x.permute(*d))(y, 0, 2, 1)

    x = A_x
    h = x + _A_ref(_layernorm(x, axis=-1), A_k_cache, A_v_cache, A_wq, A_wo)
    h2 = h + _B_ref(_layernorm(h, axis=-1), B_w1, B_b1, B_w2, B_b2)
    return h2
```

```python
import re

HEADER_ARGS = """; Kernarg layout for this problem (104 bytes, ptrs only, base s[0:1]):
;   offset  16: d_in[2] A_v_cache  shape=(1, 32, 32768, 192) dtype=bfloat16 strides=(402653184, 12582912, 384, 2) contiguous=True
"""
KNAME = "sequential_preLN__sliding_block_cached__mixer_token_mlp__decode_kernel"

TRANS = ("v_exp_f32", "v_log_f32", "v_rcp_f32", "v_rsq_f32", "v_sqrt_f32", "v_sin_f32", "v_cos_f32", "v_rcp_iflag_f32")

def regs_of(op):
    op = op.strip()
    neg = op.lstrip("-")
    if neg.startswith("abs(") and neg.endswith(")"): neg = neg[4:-1]
    if neg.startswith("|") and neg.endswith("|"): neg = neg[1:-1]
    m = re.fullmatch(r"([vsa])\[(\d+):(\d+)\]", neg)
    if m: return [f"{m.group(1)}{i}" for i in range(int(m.group(2)), int(m.group(3)) + 1)]
    m = re.fullmatch(r"([vsa])(\d+)", neg)
    if m: return [neg]
    if neg in ("vcc", "vcc_lo", "vcc_hi"): return ["vcc"]
    if neg in ("exec", "exec_lo", "exec_hi"): return ["exec"]
    if neg == "m0": return ["m0"]
    return []

class Ins:
    def __init__(self, text):
        self.text = text
        t = text.split(";")[0].strip()
        self.is_label = t.endswith(":") and " " not in t
        self.is_dir = t.startswith(".") or t == ""
        self.mn = t.split()[0] if t and not self.is_label else ""
        rest = t[len(self.mn):].strip() if self.mn else ""
        ops, depth, cur = [], 0, ""
        for ch in rest:
            if ch in "[(": depth += 1
            if ch in "])": depth -= 1
            if ch == "," and depth == 0: ops.append(cur.strip()); cur = ""
            else: cur += ch
        if cur.strip(): ops.append(cur.strip())
        self.mods = ""
        if ops:
            parts = ops[-1].split(None, 1)
            ops[-1] = parts[0]
            self.mods = parts[1] if len(parts) > 1 else ""
        self.ops = ops
        mn = self.mn
        base = re.sub(r"_(e32|e64|dpp|sdwa)$", "", mn)
        self.base = base
        self.valu = mn.startswith("v_") and not mn.startswith("v_mfma") and mn not in ("v_nop",)
        self.mfma = mn.startswith("v_mfma")
        self.vmem = mn.startswith(("buffer_", "global_", "flat_"))
        self.ds = mn.startswith("ds_")
        self.salu = mn.startswith("s_")
        self.dpp = mn.endswith("_dpp") or any(k in t for k in ("quad_perm", "row_shr", "row_shl", "row_ror", "row_mirror", "row_half_mirror", "row_bcast", "row_newbcast", "wave_"))
        self.trans = base in TRANS
        self.dot = base.startswith("v_dot")
        self.writes, self.reads = [], []
        if self.valu or self.mfma:
            if base.startswith("v_cmp"):
                self.writes = regs_of(ops[0]); srcs = ops[1:]
            elif base in ("v_readlane_b32", "v_readfirstlane_b32"):
                self.writes = regs_of(ops[0]); srcs = ops[1:]
            elif base in ("v_permlane16_swap_b32", "v_permlane32_swap_b32", "v_swap_b32"):
                self.writes = regs_of(ops[0]) + regs_of(ops[1]); srcs = ops
            elif base in ("v_add_co_u32", "v_sub_co_u32", "v_addc_co_u32", "v_subb_co_u32", "v_div_scale_f32", "v_mad_u64_u32"):
                self.writes = regs_of(ops[0]) + regs_of(ops[1]); srcs = ops[2:]
            else:
                self.writes = regs_of(ops[0]); srcs = ops[1:]
                if base in ("v_fmac_f32", "v_dot2c_f32_bf16", "v_pk_fmac_f16", "v_writelane_b32") or self.dpp:
                    srcs = ops
            for s in srcs: self.reads += regs_of(s)
            if base == "v_cndmask_b32" and len(ops) == 3: self.reads.append("vcc")
            if base in ("v_div_fmas_f32",): self.reads.append("vcc")
        elif self.vmem:
            if "load" in mn and "lds" not in self.mods and not mn.endswith("lds_dwordx4") and not mn.endswith("lds_dword"):
                self.writes = regs_of(ops[0])
                for s in ops[1:]: self.reads += regs_of(s)
            elif "atomic" in mn and ("sc0" in self.mods):
                self.writes = regs_of(ops[0])
                for s in ops[1:]: self.reads += regs_of(s)
            else:
                for s in ops: self.reads += regs_of(s)
            self.wide_store = ("store" in mn) and (mn.endswith("x3") or mn.endswith("x4"))
            if self.wide_store:
                if mn.startswith("buffer_"): self.store_data = regs_of(ops[0])
                else: self.store_data = regs_of(ops[1])
        elif self.ds:
            if base.startswith(("ds_read", "ds_bpermute", "ds_permute", "ds_swizzle")):
                self.writes = regs_of(ops[0])
                for s in ops[1:]: self.reads += regs_of(s)
            else:
                for s in ops: self.reads += regs_of(s)
        elif self.salu:
            if base.startswith("s_cmp") or base.startswith(("s_cbranch", "s_branch", "s_waitcnt", "s_nop", "s_barrier", "s_endpgm", "s_sleep", "s_setprio", "s_bitcmp")):
                for s in ops: self.reads += regs_of(s)
            elif ops:
                self.writes = regs_of(ops[0])
                for s in ops[1:]: self.reads += regs_of(s)
                if "saveexec" in base: self.writes.append("exec")
    def states(self):
        if self.is_label or self.is_dir: return 0
        if self.mn == "s_nop": return int(self.ops[0], 0) + 1
        return 1

def need(prev, cur):
    n = 0
    pw = set(prev.writes)
    cr, cw = set(cur.reads), set(cur.writes)
    vpw = {r for r in pw if r[0] in "va" and r != "vcc"}
    spw = pw - vpw
    if prev.valu:
        if vpw & cr:
            if cur.valu and cur.dpp: n = max(n, 2)
            if cur.base in ("v_readlane_b32", "v_readfirstlane_b32"): n = max(n, 1)
            if cur.base.startswith("v_permlane"): n = max(n, 2)
            if prev.trans and cur.valu and not cur.trans: n = max(n, 1)
            if prev.trans and (cur.vmem or cur.ds): n = max(n, 1)
            if cur.mfma: n = max(n, 2)
            if ("op_sel" in prev.mods and not prev.mn.startswith("v_pk_")) or "sdwa" in prev.mn or "dst_sel" in prev.mods: n = max(n, 1)
        if prev.dot:
            if vpw & (cr | cw):
                if cur.dot and cur.base == prev.base:
                    ab = set()
                    if cur.base == "v_dot2c_f32_bf16":
                        for s in cur.ops[1:3]: ab |= set(regs_of(s))
                    else:
                        for s in cur.ops[1:3]: ab |= set(regs_of(s))
                    if vpw & ab: n = max(n, 3)
                elif cur.valu or cur.vmem or cur.ds or cur.mfma: n = max(n, 3)
        if spw & cr:
            if cur.valu:
                n = max(n, 2)
                if cur.base in ("v_readlane_b32", "v_writelane_b32") and len(cur.ops) > 2 and set(regs_of(cur.ops[2])) & spw: n = max(n, 4)
            if cur.vmem: n = max(n, 5)
            if cur.salu: n = max(n, 1) if False else n
        if "exec" in pw:
            if cur.valu: n = max(n, 5 if cur.dpp else 2)
    if prev.vmem and getattr(prev, "wide_store", False):
        if set(prev.store_data) & cw:
            n = max(n, 2)
    if prev.salu and "m0" in pw and (cur.vmem or cur.ds): n = max(n, 1)
    if prev.mfma:
        passes = 8 if "32x32" in prev.mn else 4
        d = set(prev.writes)
        if d & (cr | cw):
            if cur.mfma:
                srcc = set(regs_of(cur.ops[3])); ab = set(regs_of(cur.ops[1])) | set(regs_of(cur.ops[2]))
                if d & ab: n = max(n, {4: 8, 8: 12}[passes])
                if d & srcc and srcc != d: n = max(n, {4: 6, 8: 10}[passes])
            else: n = max(n, {4: 8, 8: 12}[passes])
        srcc = set(regs_of(prev.ops[3]))
        if cur.valu and srcc & cw: n = max(n, {4: 3, 8: 7}[passes])
    return n

class Asm:
    def __init__(self):
        self.items = []
    def __call__(self, s=""):
        for l in s.split("\n"):
            l = l.strip()
            if l: self.items.append(l)
    def label(self, n): self.items.append(n + ":")
    def text(self, hazards=True):
        out = []
        for l in self.items:
            ins = Ins(l)
            if hazards and not (ins.is_label or ins.is_dir):
                req = 0; dist = 0
                for p in reversed(out):
                    if p.is_label or p.is_dir: continue
                    if dist >= 20: break
                    n = need(p, ins)
                    if n - dist > req: req = n - dist
                    dist += p.states()
                if req > 0:
                    out.append(Ins(f"s_nop {req-1}"))
            out.append(ins)
        return "\n".join(("" if i.is_label else "  ") + i.text for i in out) + "\n"

def wrap(body, grid, block, lds, vgpr, sgpr, name=KNAME, accum=None):
    accum = accum or ((vgpr + 3) // 4 * 4)
    return (HEADER_ARGS + f"; @launch grid=({grid},1,1) block=({block},1,1) lds={lds}\n"
      + '.amdgcn_target "amdgcn-amd-amdhsa--gfx950"\n.text\n'
      + f".globl {name}\n.p2align 8\n.type {name},@function\n{name}:\n"
      + body
      + f""".section .rodata,"a"
.p2align 6
.amdhsa_kernel {name}
  .amdhsa_next_free_vgpr {vgpr}
  .amdhsa_next_free_sgpr {sgpr}
  .amdhsa_accum_offset {accum}
  .amdhsa_group_segment_fixed_size 0
  .amdhsa_kernarg_size 104
  .amdhsa_user_sgpr_count 2
  .amdhsa_user_sgpr_kernarg_segment_ptr 1
  .amdhsa_system_sgpr_workgroup_id_x 1
  .amdhsa_float_denorm_mode_32 3
.end_amdhsa_kernel
""")
```

```python
import sys
from gen import *

WS_GEN = 0
WS_QP  = 0x1000
WS_OP  = 0x50000
WS_WP  = 0xA0000
WS_HP  = 0x100000
WS_SIZE = 0x110000
WS_STAMP = 0x4000000
L_Q = 0
L_M = 512
L_RED = 1024
L_HP = 9216
L_HH = 11776
L_Y = 14336
LDS_SIZE = 16384

def gen(stamps=False, NV0=3, spin_limit=1 << 20):
    a = Asm()
    nst = [0]
    def stamp(i):
        if stamps: a(f"s_memrealtime s[{84+2*(i%8)}:{85+2*(i%8)}]") if i < 8 else None

    VL, VOFF = "v0", "v1"
    KB, VB = 64, 160
    sK, sV, sWS, sX, sW = "s[44:47]", "s[48:51]", "s[52:55]", "s[56:59]", "s[60:63]"
    TAG = "s80"
    def allreduce_add(v, t, op="v_add_f32"):
        for m in ("quad_perm:[1,0,3,2]", "quad_perm:[2,3,0,1]", "row_half_mirror", "row_mirror"):
            a(f"{op}_dpp {v}, {v}, {v} {m} row_mask:0xf bank_mask:0xf")
        a(f"v_mov_b32 {t}, {v}")
        a(f"v_permlane16_swap_b32 {t}, {v}")
        a(f"{op} {v}, {t}, {v}")
        a(f"v_mov_b32 {t}, {v}")
        a(f"v_permlane32_swap_b32 {t}, {v}")
        a(f"{op} {v}, {t}, {v}")
    def reduce_hi(v, t, op="v_add_f32"):
        a(f"{op}_dpp {v}, {v}, {v} row_ror:8 row_mask:0xf bank_mask:0xf")
        a(f"v_mov_b32 {t}, {v}")
        a(f"v_permlane16_swap_b32 {t}, {v}")
        a(f"{op} {v}, {t}, {v}")
        a(f"v_mov_b32 {t}, {v}")
        a(f"v_permlane32_swap_b32 {t}, {v}")
        a(f"{op} {v}, {t}, {v}")
    def reduce8(base):
        for j in range(4): a(f"v_permlane32_swap_b32 v{base+j}, v{base+j+4}")
        for j in range(4): a(f"v_add_f32 v{base+j}, v{base+j}, v{base+j+4}")
        for j in range(2): a(f"v_permlane16_swap_b32 v{base+j}, v{base+j+2}")
        for j in range(2): a(f"v_add_f32 v{base+j}, v{base+j}, v{base+j+2}")
        for j in range(2): a(f"v_add_f32_dpp v{base+j}, v{base+j}, v{base+j} row_ror:8 row_mask:0xf bank_mask:0xf")
    def embed(base, tagv):
        for i in range(4):
            a(f"v_perm_b32 v{base+i}, v{base+i}, {tagv}, s{81 if False else 72+i}")
    def check(base, t0, t1, dst):
        a(f"v_perm_b32 {t0}, v{base+1}, v{base}, s76")
        a(f"v_perm_b32 {t1}, v{base+3}, v{base+2}, s77")
        a(f"v_or_b32 {t0}, {t0}, {t1}")
        a(f"v_cmp_eq_u32 {dst}, {TAG}, {t0}")
    def strip(base, n=4):
        for i in range(n): a(f"v_and_b32 v{base+i}, 0xffffff00, v{base+i}")
    def rnd_pair(d0, d1, s0, s1, t):
        a(f"v_cvt_pk_bf16_f32 {t}, {s0}, {s1}")
        a(f"v_lshlrev_b32 {d0}, 16, {t}")
        a(f"v_and_b32 {d1}, 0xffff0000, {t}")
    def rnd1(d, s):
        a(f"v_cvt_pk_bf16_f32 {d}, {s}, {s}")
        a(f"v_and_b32 {d}, 0xffff0000, {d}")
    def spin_guard(lbl_retry, lbl_fail):
        a("s_sub_u32 s78, s78, 1")
        a("s_cmp_eq_u32 s78, 0")
        a(f"s_cbranch_scc0 {lbl_retry}")

    if stamps:
        for i in range(84, 100): a(f"s_mov_b32 s{i}, 0")
    stamp(0)
    a("s_cmp_ge_u32 s2, 256")
    a("s_cbranch_scc1 L_end")
    a("s_load_dwordx16 s[16:31], s[0:1], 0")
    a("s_load_dwordx8 s[32:39], s[0:1], 64")
    a("s_load_dwordx2 s[40:41], s[0:1], 96")
    a("v_lshrrev_b32 v1, 6, v0")
    a("v_and_b32 v0, 63, v0")
    a("v_readfirstlane_b32 s3, v1")
    a("s_lshr_b32 s4, s2, 3")
    a("s_and_b32 s5, s2, 7")
    a("v_lshrrev_b32 v2, 3, v0")
    a("v_and_b32 v3, 7, v0")
    a("v_mul_u32_u24 v1, 384, v2")
    a("v_lshl_add_u32 v1, v3, 4, v1")
    for i in range(4): a(f"s_mov_b32 s{72+i}, 0x{0x07060500+i:08x}")
    a("s_mov_b32 s76, 0x0c0c0400")
    a("s_mov_b32 s77, 0x04000c0c")
    a(f"s_mov_b32 s78, {spin_limit}")
    a("s_lshl_b32 s6, s4, 15")
    a("s_lshl_b32 s7, s5, 9")
    a("s_add_u32 s6, s6, s7")
    a("s_lshl_b32 s7, s3, 6")
    a("s_add_u32 s6, s6, s7")
    a("s_add_u32 s6, s6, 28672")
    a("s_mul_i32 s6, s6, 384")
    a("s_waitcnt lgkmcnt(0)")
    a("s_mov_b32 s52, s40"); a("s_mov_b32 s53, s41"); a(f"s_mov_b32 s54, {WS_SIZE}"); a("s_mov_b32 s55, 0x20000")
    a("buffer_load_dword v4, off, s[52:55], 0 sc1")
    a("s_add_u32 s44, s18, s6"); a("s_addc_u32 s45, s19, 0"); a("s_mov_b32 s46, 24576"); a("s_mov_b32 s47, 0x20000")
    a("s_add_u32 s48, s20, s6"); a("s_addc_u32 s49, s21, 0"); a("s_mov_b32 s50, 24576"); a("s_mov_b32 s51, 0x20000")
    a("s_mov_b32 s56, s16"); a("s_mov_b32 s57, s17"); a("s_mov_b32 s58, 1280"); a("s_mov_b32 s59, 0x20000")
    stamp(1)
    def tag_from_gen():
        a("v_readfirstlane_b32 s79, v4")
        a("s_add_u32 s79, s79, 1")
        a("s_and_b32 s79, s79, 0xff")
        a("s_mul_i32 s80, s79, 0x01010101")
        a("s_xor_b32 s80, s80, 0xffaa5500")
    def k_loads():
        for t in range(8):
            for s in range(3):
                off = t * 3072 + s * 128
                so = off // 4096 * 4096
                r = KB + (t * 3 + s) * 4
                if off - so == s * 128 or True:
                    pass
                a(f"s_mov_b32 s8, {so}")
                a(f"buffer_load_dwordx4 v[{r}:{r+3}], {VOFF}, {sK}, s8 offen offset:{off-so} nt")
    def v_loads(t0, t1):
        for t in range(t0, t1):
            for s in range(3):
                off = t * 3072 + s * 128
                so = off // 4096 * 4096
                r = VB + (t * 3 + s) * 4
                a(f"s_mov_b32 s8, {so}")
                a(f"buffer_load_dwordx4 v[{r}:{r+3}], {VOFF}, {sV}, s8 offen offset:{off-so} nt")

    a("s_cmp_lt_u32 s3, 3")
    a("s_cbranch_scc1 L_qproj")
    k_loads()
    a("s_cmp_eq_u32 s3, 3")
    a("s_cbranch_scc1 L_qpoll")
    a("s_waitcnt vmcnt(24)")
    tag_from_gen()
    a("s_branch L_bar0")

    a("L_qproj:")
    a("v_lshlrev_b32 v5, 2, v0")
    for i in range(5): a(f"buffer_load_dword v{8+i}, v5, {sX}, 0 offen offset:{256*i}")
    a("v_lshlrev_b32 v6, 1, v2")
    a("s_mul_i32 s8, s5, 160")
    for i in range(10): a(f"buffer_load_ushort v{16+i}, v6, {sX}, s8 offen offset:{16*i}")
    a("s_mul_i32 s9, s5, 983040")
    a("s_mul_i32 s10, s4, 384")
    a("s_add_u32 s9, s9, s10")
    a("s_lshl_b32 s10, s3, 7")
    a("s_add_u32 s9, s9, s10")
    a("s_add_u32 s60, s22, s9"); a("s_addc_u32 s61, s23, 0"); a("s_mov_b32 s62, 970880"); a("s_mov_b32 s63, 0x20000")
    a("v_mul_u32_u24 v7, 12288, v2")
    a("v_lshl_add_u32 v7, v3, 4, v7")
    for i in range(10):
        a(f"s_mov_b32 s8, {i*98304}")
        a(f"buffer_load_dwordx4 v[{KB+4*i}:{KB+4*i+3}], v7, {sW}, s8 offen nt")
    a("s_waitcnt vmcnt(20)")
    tag_from_gen()
    for i in range(5):
        a(f"v_lshlrev_b32 v{32+2*i}, 16, v{8+i}")
        a(f"v_and_b32 v{33+2*i}, 0xffff0000, v{8+i}")
    a("v_add_f32 v44, v32, v33")
    for i in range(2, 10): a(f"v_add_f32 v44, v44, v{32+i}")
    allreduce_add("v44", "v45")
    a("v_mul_f32 v44, 0x3acccccd, v44")
    for i in range(10): a(f"v_sub_f32 v{32+i}, v{32+i}, v44")
    a("v_mul_f32 v46, v32, v32")
    for i in range(1, 10): a(f"v_fmac_f32 v46, v{32+i}, v{32+i}")
    allreduce_add("v46", "v45")
    a("v_mul_f32 v46, 0x3acccccd, v46")
    rnd_pair("v44", "v46", "v44", "v46", "v45")
    a("v_add_f32 v46, 0x3727c5ac, v46")
    rnd1("v46", "v46")
    a("v_sqrt_f32 v46, v46")
    rnd1("v46", "v46")
    a("v_rcp_f32 v46, v46")
    a("s_waitcnt vmcnt(10)")
    for i in range(10):
        a(f"v_lshlrev_b32 v{16+i}, 16, v{16+i}")
        a(f"v_sub_f32 v{16+i}, v{16+i}, v44")
    for i in range(0, 10, 2):
        rnd_pair(f"v{16+i}", f"v{17+i}", f"v{16+i}", f"v{17+i}", "v45")
    for i in range(10):
        a(f"v_mul_f32 v{16+i}, v{16+i}, v46")
    for i in range(10):
        a(f"v_cvt_pk_bf16_f32 v{16+i}, v{16+i}, 0")
        a(f"v_lshlrev_b32 v{32+i}, 16, v{16+i}")
    for j in range(8): a(f"v_mov_b32 v{44+j}, 0")
    for i in range(10):
        a(f"s_waitcnt vmcnt({9-i})")
        for v in range(4):
            a(f"v_dot2c_f32_bf16 v{44+2*v}, v{KB+4*i+v}, v{16+i}")
            a(f"v_dot2c_f32_bf16 v{45+2*v}, v{KB+4*i+v}, v{32+i}")
    reduce8(44)
    a("v_mov_b32_dpp v46, v44 quad_perm:[1,1,3,3] row_mask:0xf bank_mask:0xf")
    a("v_mov_b32_dpp v47, v45 quad_perm:[1,1,3,3] row_mask:0xf bank_mask:0xf")
    a(f"v_mov_b32 v52, {TAG}")
    embed(44, "v52")
    a("v_bfe_u32 v53, v0, 1, 2")
    a("v_lshrrev_b32 v54, 4, v0")
    a("v_lshl_add_u32 v53, v54, 2, v53")
    a("v_lshlrev_b32 v53, 4, v53")
    a("s_lshl_b32 s8, s2, 10")
    a("s_lshl_b32 s9, s3, 8")
    a("s_add_u32 s8, s8, s9")
    a(f"s_add_u32 s8, s8, {WS_QP}")
    a("s_mov_b32 exec_lo, 0x00550055"); a("s_mov_b32 exec_hi, 0x00550055")
    a(f"buffer_store_dwordx4 v[44:47], v53, {sWS}, s8 offen sc1")
    a("s_mov_b64 exec, -1")
    stamp(2)
    k_loads()
    a("s_branch L_bar0")

    a("L_qpoll:")
    a("s_waitcnt vmcnt(24)")
    tag_from_gen()
    a("v_lshlrev_b32 v5, 4, v0")
    a("s_lshl_b32 s8, s4, 13")
    a(f"s_add_u32 s8, s8, {WS_QP}")
    a("s_mov_b32 exec_lo, -1"); a("s_mov_b32 exec_hi, 0xffff")
    a("L_qpoll_retry:")
    for p in range(8):
        a(f"buffer_load_dwordx4 v[{VB+4*p}:{VB+4*p+3}], v5, {sWS}, s8 offen offset:{(p%4)*1024} sc1") if p < 4 else None
        if p == 3: a("s_add_u32 s9, s8, 4096")
        if p >= 4: a(f"buffer_load_dwordx4 v[{VB+4*p}:{VB+4*p+3}], v5, {sWS}, s9 offen offset:{(p%4)*1024} sc1")
    a("s_waitcnt vmcnt(0)")
    a("s_mov_b64 s[12:13], exec")
    for p in range(8):
        check(VB + 4 * p, "v6", "v7", "vcc")
        a("s_and_b64 s[12:13], s[12:13], vcc")
    a("s_cmp_eq_u64 s[12:13], exec")
    a("s_cbranch_scc1 L_qpoll_ok")
    spin_guard("L_qpoll_retry", None)
    a("L_qpoll_ok:")
    for p in range(8): strip(VB + 4 * p)
    for p in range(1, 8):
        for e in range(4): a(f"v_add_f32 v{VB+e}, v{VB+e}, v{VB+4*p+e}")
    a(f"v_cvt_pk_bf16_f32 v{VB}, v{VB}, v{VB+1}")
    a(f"v_cvt_pk_bf16_f32 v{VB+1}, v{VB+2}, v{VB+3}")
    a("v_lshrrev_b32 v6, 4, v0")
    a("v_lshlrev_b32 v6, 7, v6")
    a("v_and_b32 v7, 3, v0")
    a("v_lshl_add_u32 v6, v7, 5, v6")
    a("v_bfe_u32 v7, v0, 2, 2")
    a("v_lshl_add_u32 v6, v7, 2, v6")
    a(f"ds_write_b32 v6, v{VB} offset:{L_Q}")
    a(f"ds_write_b32 v6, v{VB+1} offset:{L_Q+16}")
    a("s_mov_b64 exec, -1")
    a("s_waitcnt lgkmcnt(0)")
    stamp(2)

    a("L_bar0:")
    a("s_nop 4")
    a("s_barrier")
    stamp(3)
    a("v_lshlrev_b32 v5, 4, v3")
    for s in range(3): a(f"ds_read_b128 v[{8+4*s}:{11+4*s}], v5 offset:{L_Q+128*s}")
    v_loads(0, NV0)
    a("s_waitcnt lgkmcnt(0)")
    for t in range(0, 8, 2):
        a(f"v_mov_b32 v{24+t}, 0"); a(f"v_mov_b32 v{25+t}, 0")
        a(f"s_waitcnt vmcnt({3*(7-(t+1)) + 3*NV0})")
        for s in range(3):
            for v in range(4):
                a(f"v_dot2c_f32_bf16 v{24+t}, v{KB+(t*3+s)*4+v}, v{8+4*s+v}")
                a(f"v_dot2c_f32_bf16 v{25+t}, v{KB+((t+1)*3+s)*4+v}, v{8+4*s+v}")
        for m in ("quad_perm:[1,0,3,2]", "quad_perm:[2,3,0,1]", "row_half_mirror"):
            a(f"v_add_f32_dpp v{24+t}, v{24+t}, v{24+t} {m} row_mask:0xf bank_mask:0xf")
            a(f"v_add_f32_dpp v{25+t}, v{25+t}, v{25+t} {m} row_mask:0xf bank_mask:0xf")
        rnd_pair(f"v{24+t}", f"v{25+t}", f"v{24+t}", f"v{25+t}", "v56")
        a(f"v_mul_f32 v{24+t}, 0x3d93cd3a, v{24+t}")
        a(f"v_mul_f32 v{25+t}, 0x3d93cd3a, v{25+t}")
        rnd_pair(f"v{24+t}", f"v{25+t}", f"v{24+t}", f"v{25+t}", "v56")
    a("v_max3_f32 v56, v24, v25, v26")
    a("v_max3_f32 v56, v56, v27, v28")
    a("v_max3_f32 v56, v56, v29, v30")
    a("v_max_f32 v56, v56, v31")
    reduce_hi("v56", "v57", "v_max_f32")
    a("s_lshl_b32 s8, s3, 2")
    a("v_mov_b32 v57, s8")
    a("s_mov_b64 exec, 1")
    a(f"ds_write_b32 v57, v56 offset:{L_M}")
    a("s_mov_b64 exec, -1")
    v_loads(NV0, 8)
    a("v_lshrrev_b32 v61, 4, v0")
    for s in range(3):
        a(f"v_add_u32 v62, {8*s}, v3")
        a("v_mul_u32_u24 v63, 43, v62")
        a("v_lshrrev_b32 v63, 8, v63")
        a("v_mul_u32_u24 v57, 6, v63")
        a("v_sub_u32 v62, v62, v57")
        a("v_lshlrev_b32 v63, 3, v63")
        a("v_lshl_add_u32 v63, v61, 1, v63")
        a("v_lshl_add_u32 v63, v63, 3, v62")
        a("v_lshlrev_b32 v63, 2, v63")
        a("s_lshl_b32 s8, s3, 10")
        a(f"v_add_u32 v{58+s}, s8, v63")
    a("s_waitcnt lgkmcnt(0)")
    stamp(4)
    a("s_barrier")
    a("v_mov_b32 v57, 0")
    a(f"ds_read_b128 v[8:11], v57 offset:{L_M}")
    a(f"ds_read_b128 v[12:15], v57 offset:{L_M+16}")
    a("s_lshr_b32 s9, s5, 1")
    a("s_and_b32 s10, s5, 1")
    a("s_mul_i32 s11, s4, 192")
    a("s_mul_i32 s12, s9, 48")
    a("s_add_u32 s11, s11, s12")
    a("s_mul_i32 s11, s11, 1280")
    a("s_mul_i32 s12, s10, 640")
    a("s_add_u32 s11, s11, s12")
    a("s_lshl_b32 s12, s3, 7")
    a("s_add_u32 s11, s11, s12")
    a("s_add_u32 s60, s24, s11"); a("s_addc_u32 s61, s25, 0")
    a("s_cmp_lt_u32 s3, 5")
    a(f"s_cselect_b32 s62, {47*1280+128}, 0"); a("s_mov_b32 s63, 0x20000")
    a("v_mul_u32_u24 v7, 1280, v2")
    a("v_lshl_add_u32 v7, v3, 4, v7")
    for i in range(6):
        a(f"s_mov_b32 s8, {i*10240}")
        a(f"buffer_load_dwordx4 v[{KB+4*i}:{KB+4*i+3}], v7, {sW}, s8 offen nt")
    a("s_lshl_b32 s8, s3, 7")
    a("v_lshlrev_b32 v6, 1, v0")
    for pi, (lo, hi) in enumerate([(28, 29), (30, 31), (32, 33)]):
        a(f"s_mov_b32 s64, s{lo}"); a(f"s_mov_b32 s65, s{hi}"); a("s_mov_b32 s66, 3072"); a("s_mov_b32 s67, 0x20000")
        for k in range(3):
            a(f"buffer_load_ushort v{88+3*pi+k}, v6, s[64:67], s8 offen offset:{1024*k}")
    a("s_min_u32 s13, s2, 159")
    a("s_cmp_ge_u32 s13, 80")
    a("s_cselect_b32 s14, 1, 0")
    a("s_mul_i32 s15, s14, 80")
    a("s_sub_u32 s15, s13, s15")
    a("s_lshr_b32 s42, s15, 4")
    a("s_and_b32 s43, s15, 15")
    a("s_mul_i32 s68, s14, 320")
    a("s_lshl_b32 s69, s42, 6")
    a("s_add_u32 s68, s68, s69")
    a("s_and_b32 s69, s43, 3")
    a("s_lshl_b32 s69, s69, 4")
    a("s_add_u32 s68, s68, s69")
    a("s_lshr_b32 s69, s43, 2")
    a("s_lshl_b32 s69, s69, 1")
    a("s_add_u32 s68, s68, s69")
    a("s_lshl_b32 s68, s68, 1")
    a(f"buffer_load_dword v98, off, {sX}, s68")
    a(f"buffer_load_dword v99, off, {sX}, s68 offset:16")
    a("s_mov_b32 s64, s34"); a("s_mov_b32 s65, s35"); a("s_mov_b32 s66, 2"); a("s_mov_b32 s67, 0x20000")
    a("buffer_load_ushort v100, off, s[64:67], 0")
    NAFT = 6 + 9 + 3
    a("s_waitcnt lgkmcnt(0)")
    a("v_max3_f32 v56, v8, v9, v10")
    a("v_max3_f32 v56, v56, v11, v12")
    a("v_max3_f32 v56, v56, v13, v14")
    a("v_max_f32 v56, v56, v15")
    for t in range(8): a(f"v_sub_f32 v{24+t}, v{24+t}, v56")
    for t in range(8): a(f"v_mul_f32 v{24+t}, 0x3fb8aa3b, v{24+t}")
    for t in range(8): a(f"v_exp_f32 v{24+t}, v{24+t}")
    for t in range(8):
        a(f"v_cvt_pk_bf16_f32 v{8+t}, v{24+t}, 0")
        a(f"v_lshlrev_b32 v{16+t}, 16, v{8+t}")
    a("v_add_f32 v57, v24, v25")
    for t in range(2, 8): a(f"v_add_f32 v57, v57, v{24+t}")
    reduce_hi("v57", "v62")
    for j in range(24): a(f"v_mov_b32 v{32+j}, 0")
    for t in range(8):
        a(f"s_waitcnt vmcnt({3*(7-t) + NAFT})")
        for s in range(3):
            for v in range(4):
                a(f"v_dot2c_f32_bf16 v{32+8*s+2*v}, v{VB+(t*3+s)*4+v}, v{8+t}")
                a(f"v_dot2c_f32_bf16 v{33+8*s+2*v}, v{VB+(t*3+s)*4+v}, v{16+t}")
    stamp(5)
    for s in range(3): reduce8(32 + 8 * s)
    for s in range(3):
        a(f"ds_write_b32 v{58+s}, v{32+8*s} offset:{L_RED}")
        a(f"ds_write_b32 v{58+s}, v{33+8*s} offset:{L_RED+32}")
    a("v_lshlrev_b32 v62, 5, v0")
    a("s_lshl_b32 s8, s3, 10")
    a("v_add_u32 v62, s8, v62")
    a("s_mov_b32 exec_hi, 0")
    a(f"ds_write_b32 v62, v57 offset:{L_RED+28}")
    a("s_mov_b32 exec_hi, -1")
    a("s_waitcnt lgkmcnt(0)")
    a("s_barrier")
    a("s_cmp_eq_u32 s3, 5"); a("s_cbranch_scc1 L_publish")
    a("s_cmp_eq_u32 s3, 6"); a("s_cbranch_scc1 L_reducer")
    a("s_cmp_eq_u32 s3, 7"); a("s_cbranch_scc1 L_final")
    a("v_lshlrev_b32 v5, 10, v3")
    a("v_lshl_add_u32 v5, v2, 5, v5")
    a("s_lshl_b32 s8, s4, 13")
    a("s_lshl_b32 s12, s9, 8")
    a("s_add_u32 s8, s8, s12")
    a(f"s_add_u32 s8, s8, {WS_OP}")
    a("L_opoll_retry:")
    a(f"buffer_load_dwordx4 v[8:11], v5, {sWS}, s8 offen sc1")
    a(f"buffer_load_dwordx4 v[12:15], v5, {sWS}, s8 offen offset:16 sc1")
    a("s_waitcnt vmcnt(0)")
    check(8, "v6", "v7", "s[12:13]")
    check(12, "v6", "v7", "vcc")
    a("s_and_b64 s[12:13], s[12:13], vcc")
    a("s_cmp_eq_u64 s[12:13], exec")
    a("s_cbranch_scc1 L_opoll_ok")
    spin_guard("L_opoll_retry", None)
    a("L_opoll_ok:")
    stamp(6)
    strip(8, 8)
    a("v_mov_b32 v16, v14")
    for m in ("quad_perm:[1,0,3,2]", "quad_perm:[2,3,0,1]", "row_half_mirror"):
        a(f"v_max_f32_dpp v16, v16, v16 {m} row_mask:0xf bank_mask:0xf")
    a("v_sub_f32 v14, v14, v16")
    a("v_mul_f32 v14, 0x3fb8aa3b, v14")
    a("v_exp_f32 v14, v14")
    for i in range(6): a(f"v_mul_f32 v{8+i}, v{8+i}, v14")
    a("v_mul_f32 v15, v15, v14")
    for m in ("quad_perm:[1,0,3,2]", "quad_perm:[2,3,0,1]", "row_half_mirror"):
        for r in (15, 8, 9, 10, 11, 12, 13):
            a(f"v_add_f32_dpp v{r}, v{r}, v{r} {m} row_mask:0xf bank_mask:0xf")
    a("v_rcp_f32 v15, v15")
    for i in range(6): a(f"v_mul_f32 v{8+i}, v{8+i}, v15")
    for i in range(6):
        a(f"v_cvt_pk_bf16_f32 v{8+i}, v{8+i}, 0")
        a(f"v_lshlrev_b32 v{16+i}, 16, v{8+i}")
    for j in range(8): a(f"v_mov_b32 v{32+j}, 0")
    for i in range(6):
        for v in range(4):
            a(f"v_dot2c_f32_bf16 v{32+2*v}, v{KB+4*i+v}, v{8+i}")
            a(f"v_dot2c_f32_bf16 v{33+2*v}, v{KB+4*i+v}, v{16+i}")
    reduce8(32)
    a("v_mov_b32_dpp v34, v32 quad_perm:[1,1,3,3] row_mask:0xf bank_mask:0xf")
    a("v_mov_b32_dpp v35, v33 quad_perm:[1,1,3,3] row_mask:0xf bank_mask:0xf")
    a(f"v_mov_b32 v52, {TAG}")
    embed(32, "v52")
    a("v_bfe_u32 v53, v0, 1, 2")
    a("v_lshrrev_b32 v54, 4, v0")
    a("v_lshl_add_u32 v53, v54, 2, v53")
    a("v_lshlrev_b32 v53, 4, v53")
    a("s_mul_i32 s8, s2, 1280")
    a("s_lshl_b32 s12, s3, 8")
    a("s_add_u32 s8, s8, s12")
    a(f"s_add_u32 s8, s8, {WS_WP}")
    a("s_mov_b32 exec_lo, 0x00550055"); a("s_mov_b32 exec_hi, 0x00550055")
    a(f"buffer_store_dwordx4 v[32:35], v53, {sWS}, s8 offen sc1")
    a("s_mov_b64 exec, -1")
    a("s_branch L_mlp")

    a("L_publish:")
    a("v_lshlrev_b32 v5, 4, v0")
    for w in range(8): a(f"ds_read_b128 v[{8+4*w}:{11+4*w}], v5 offset:{L_RED+1024*w}")
    for w in range(1, 8):
        a(f"s_waitcnt lgkmcnt({7-w})")
        for e in range(4): a(f"v_add_f32 v{8+e}, v{8+e}, v{8+4*w+e}")
    a("v_and_b32 v6, 1, v0")
    a("v_cmp_eq_u32 vcc, 1, v6")
    a("v_cndmask_b32 v10, v10, v56, vcc")
    a(f"v_mov_b32 v52, {TAG}")
    embed(8, "v52")
    a("s_lshl_b32 s8, s2, 10")
    a(f"s_add_u32 s8, s8, {WS_OP}")
    a(f"buffer_store_dwordx4 v[8:11], v5, {sWS}, s8 offen sc1")
    stamp(6)
    a("s_branch L_mlp")

    a("L_reducer:")
    a("s_cmp_ge_u32 s2, 160")
    a("s_cbranch_scc1 L_mlp")
    a("v_mul_u32_u24 v5, 2560, v0")
    a("s_mul_i32 s8, s14, 1280")
    a("s_lshl_b32 s12, s42, 8")
    a("s_add_u32 s8, s8, s12")
    a("s_lshl_b32 s12, s43, 4")
    a("s_add_u32 s8, s8, s12")
    a(f"s_add_u32 s8, s8, {WS_WP}")
    a(f"s_add_u32 s11, s8, {64*2560}")
    a("L_rpoll_retry:")
    a(f"buffer_load_dwordx4 v[8:11], v5, {sWS}, s8 offen sc1")
    a(f"buffer_load_dwordx4 v[12:15], v5, {sWS}, s11 offen sc1")
    a("s_waitcnt vmcnt(0)")
    check(8, "v6", "v7", "s[12:13]")
    check(12, "v6", "v7", "vcc")
    a("s_and_b64 s[12:13], s[12:13], vcc")
    a("s_cmp_eq_u64 s[12:13], exec")
    a("s_cbranch_scc1 L_rpoll_ok")
    spin_guard("L_rpoll_retry", None)
    a("L_rpoll_ok:")
    stamp(6)
    strip(8, 8)
    for e in range(4): a(f"v_add_f32 v{8+e}, v{8+e}, v{12+e}")
    for m in ("quad_perm:[1,0,3,2]", "quad_perm:[2,3,0,1]", "row_half_mirror", "row_mirror"):
        for e in range(4): a(f"v_add_f32_dpp v{8+e}, v{8+e}, v{8+e} {m} row_mask:0xf bank_mask:0xf")
    for sw in ("v_permlane16_swap_b32", "v_permlane32_swap_b32"):
        for e in range(4): a(f"v_mov_b32 v{12+e}, v{8+e}")
        for e in range(4): a(f"{sw} v{12+e}, v{8+e}")
        for e in range(4): a(f"v_add_f32 v{8+e}, v{8+e}, v{12+e}")
    rnd_pair("v8", "v9", "v8", "v9", "v6")
    rnd_pair("v10", "v11", "v10", "v11", "v6")
    a("v_lshlrev_b32 v12, 16, v98"); a("v_and_b32 v13, 0xffff0000, v98")
    a("v_lshlrev_b32 v14, 16, v99"); a("v_and_b32 v15, 0xffff0000, v99")
    for e in range(4): a(f"v_add_f32 v{8+e}, v{8+e}, v{12+e}")
    rnd_pair("v8", "v9", "v8", "v9", "v6")
    rnd_pair("v10", "v11", "v10", "v11", "v6")
    a(f"v_mov_b32 v52, {TAG}")
    embed(8, "v52")
    a("s_lshl_b32 s8, s2, 4")
    a(f"s_add_u32 s8, s8, {WS_HP}")
    a("s_mov_b64 exec, 1")
    a(f"buffer_store_dwordx4 v[8:11], off, {sWS}, s8 sc1")
    a("s_mov_b64 exec, -1")
    a("s_branch L_mlp")

    a("L_final:")
    a("v_lshlrev_b32 v5, 4, v0")
    a(f"s_mov_b32 s8, {WS_HP}")
    a("L_hpoll_retry:")
    a(f"buffer_load_dwordx4 v[8:11], v5, {sWS}, s8 offen sc1")
    a(f"buffer_load_dwordx4 v[12:15], v5, {sWS}, s8 offen offset:1024 sc1")
    a("s_mov_b32 exec_hi, 0")
    a(f"buffer_load_dwordx4 v[16:19], v5, {sWS}, s8 offen offset:2048 sc1")
    a("s_mov_b32 exec_hi, -1")
    a("s_waitcnt vmcnt(0)")
    check(8, "v6", "v7", "s[12:13]")
    check(12, "v6", "v7", "vcc")
    a("s_and_b64 s[12:13], s[12:13], vcc")
    check(16, "v6", "v7", "vcc")
    a("s_or_b32 vcc_hi, vcc_hi, -1")
    a("s_and_b64 s[12:13], s[12:13], vcc")
    a("s_cmp_eq_u64 s[12:13], exec")
    a("s_cbranch_scc1 L_hpoll_ok")
    spin_guard("L_hpoll_retry", None)
    a("L_hpoll_ok:")
    stamp(6)
    strip(8, 12)
    a("s_mov_b32 exec_lo, 0")
    for e in range(4): a(f"v_mov_b32 v{16+e}, 0")
    a("s_mov_b32 exec_lo, -1")
    a(f"ds_write_b128 v5, v[8:11] offset:{L_HH}")
    a(f"ds_write_b128 v5, v[12:15] offset:{L_HH+1024}")
    a("s_mov_b32 exec_hi, 0")
    a(f"ds_write_b128 v5, v[16:19] offset:{L_HH+2048}")
    a("s_mov_b32 exec_hi, -1")
    def layernorm(src, dst):
        a(f"v_add_f32 v32, v{src}, v{src+1}")
        for i in range(2, 12): a(f"v_add_f32 v32, v32, v{src+i}")
        allreduce_add("v32", "v33")
        a("v_mul_f32 v32, 0x3acccccd, v32")
        for i in range(12): a(f"v_sub_f32 v{36+i}, v{src+i}, v32")
        a("s_mov_b32 exec_lo, 0")
        for e in range(4): a(f"v_mov_b32 v{44+e}, 0")
        a("s_mov_b32 exec_lo, -1")
        a("v_mul_f32 v34, v36, v36")
        for i in range(1, 12): a(f"v_fmac_f32 v34, v{36+i}, v{36+i}")
        allreduce_add("v34", "v33")
        a("v_mul_f32 v34, 0x3acccccd, v34")
        rnd_pair("v32", "v34", "v32", "v34", "v33")
        a("v_add_f32 v34, 0x3727c5ac, v34")
        rnd1("v34", "v34")
        a("v_sqrt_f32 v34, v34")
        rnd1("v34", "v34")
        a("v_rcp_f32 v34, v34")
        for i in range(12): a(f"v_sub_f32 v{dst+i}, v{src+i}, v32")
        for i in range(0, 12, 2): rnd_pair(f"v{dst+i}", f"v{dst+i+1}", f"v{dst+i}", f"v{dst+i+1}", "v33")
        for i in range(12): a(f"v_mul_f32 v{dst+i}, v{dst+i}, v34")
        for i in range(0, 12, 2): rnd_pair(f"v{dst+i}", f"v{dst+i+1}", f"v{dst+i}", f"v{dst+i+1}", "v33")
        a("s_mov_b32 exec_lo, 0")
        for e in range(4): a(f"v_mov_b32 v{dst+8+e}, 0")
        a("s_mov_b32 exec_lo, -1")
    layernorm(8, 20)
    layernorm(20, 8)
    a(f"ds_write_b128 v5, v[8:11] offset:{L_HP}")
    a(f"ds_write_b128 v5, v[12:15] offset:{L_HP+1024}")
    a("s_mov_b32 exec_hi, 0")
    a(f"ds_write_b128 v5, v[16:19] offset:{L_HP+2048}")
    a("s_mov_b32 exec_hi, -1")
    a("s_cmp_eq_u32 s2, 0")
    a("s_cbranch_scc0 L_nogen")
    a("v_mov_b32 v6, s79")
    a("s_mov_b64 exec, 1")
    a(f"buffer_store_dword v6, off, {sWS}, 0 sc1")
    a("s_mov_b64 exec, -1")
    a("L_nogen:")
    a("s_waitcnt lgkmcnt(0)")

    a("L_mlp:")
    a("s_nop 4")
    a("s_lshr_b32 s8, s2, 1")
    a("s_mul_i32 s8, s8, 5")
    a("s_and_b32 s9, s2, 1")
    a("s_mul_i32 s10, s9, 3")
    a("s_add_u32 s8, s8, s10")
    a("s_lshl_b32 s10, s8, 2")
    a("v_mov_b32 v5, s10")
    a("s_waitcnt vmcnt(0)")
    for i in range(9): a(f"v_lshlrev_b32 v{88+i}, 16, v{88+i}")
    a("v_lshlrev_b32 v100, 16, v100")
    stamp(7)
    a("s_barrier")
    for e in range(3): a(f"ds_read_b32 v{8+e}, v5 offset:{L_HP+4*e}")
    for e in range(3): a(f"ds_read_b32 v{12+e}, v5 offset:{L_HH+4*e}")
    a("s_waitcnt lgkmcnt(3)")
    C1 = 0xc0135761
    C2 = 0xbdd2d3e8
    for e in range(3):
        for k in range(3): a(f"v_mul_f32 v{16+3*e+k}, v{8+e}, v{88+k}")
    def rnd_list(regs):
        for i in range(0, len(regs) - 1, 2): rnd_pair(regs[i], regs[i+1], regs[i], regs[i+1], "v6")
        if len(regs) % 2: rnd1(regs[-1], regs[-1])
    U = [f"v{16+i}" for i in range(9)]
    rnd_list(U)
    for e in range(3):
        for k in range(3): a(f"v_add_f32 v{16+3*e+k}, v{16+3*e+k}, v{91+k}")
    rnd_list(U)
    a(f"s_mov_b32 s10, 0x{C2:08x}")
    a(f"v_mov_b32 v7, 0x{C1:08x}")
    for i in range(9): a(f"v_mul_f32 v{28+i}, v{16+i}, v{16+i}")
    for i in range(9): a(f"v_fma_f32 v{28+i}, v{28+i}, s10, v7")
    for i in range(9): a(f"v_mul_f32 v{28+i}, v{28+i}, v{16+i}")
    for i in range(9): a(f"v_exp_f32 v{28+i}, v{28+i}")
    for i in range(9): a(f"v_add_f32 v{28+i}, 1.0, v{28+i}")
    for i in range(9): a(f"v_rcp_f32 v{28+i}, v{28+i}")
    for i in range(9): a(f"v_mul_f32 v{16+i}, v{16+i}, v{28+i}")
    rnd_list(U)
    for e in range(3):
        a(f"v_mul_f32 v{40+e}, v{16+3*e}, v94")
        a(f"v_fmac_f32 v{40+e}, v{17+3*e}, v95")
        a(f"v_fmac_f32 v{40+e}, v{18+3*e}, v96")
    for m in ("quad_perm:[1,0,3,2]", "quad_perm:[2,3,0,1]", "row_half_mirror", "row_mirror"):
        for e in range(3): a(f"v_add_f32_dpp v{40+e}, v{40+e}, v{40+e} {m} row_mask:0xf bank_mask:0xf")
    for sw in ("v_permlane16_swap_b32", "v_permlane32_swap_b32"):
        for e in range(3): a(f"v_mov_b32 v{44+e}, v{40+e}")
        for e in range(3): a(f"{sw} v{44+e}, v{40+e}")
        for e in range(3): a(f"v_add_f32 v{40+e}, v{40+e}, v{44+e}")
    a("s_lshl_b32 s10, s3, 4")
    a("v_mov_b32 v7, s10")
    a("v_mov_b32 v43, 0")
    a("s_mov_b64 exec, 1")
    a(f"ds_write_b128 v7, v[40:43] offset:{L_Y}")
    a("s_mov_b64 exec, -1")
    a("s_waitcnt lgkmcnt(0)")
    a("s_barrier")
    a("s_cmp_eq_u32 s3, 0")
    a("s_cbranch_scc0 L_done")
    a("v_lshlrev_b32 v7, 2, v0")
    a("v_min_u32 v7, 12, v7")
    for w in range(8): a(f"ds_read_b32 v{16+w}, v7 offset:{L_Y+16*w}")
    a("s_waitcnt lgkmcnt(0)")
    for w in range(1, 8): a(f"v_add_f32 v16, v16, v{16+w}")
    rnd1("v16", "v16")
    a("v_add_f32 v16, v16, v100")
    rnd1("v16", "v16")
    a("v_cmp_eq_u32 vcc, 1, v0")
    a("v_cndmask_b32 v12, v12, v13, vcc")
    a("v_cmp_eq_u32 vcc, 2, v0")
    a("v_cndmask_b32 v12, v12, v14, vcc")
    a("v_add_f32 v16, v16, v12")
    a("v_cvt_pk_bf16_f32 v16, v16, v16")
    a("v_add_u32 v17, s8, v0")
    a("v_lshrrev_b32 v18, 2, v17")
    a("v_and_b32 v19, 3, v17")
    a("v_cmp_le_u32 vcc, 80, v18")
    a("v_cndmask_b32 v20, 0, 1, vcc")
    a("v_mul_u32_u24 v21, 80, v20")
    a("v_sub_u32 v21, v18, v21")
    a("v_mul_u32_u24 v22, 320, v20")
    a("v_lshrrev_b32 v23, 4, v21")
    a("v_lshl_add_u32 v22, v23, 6, v22")
    a("v_and_b32 v23, 3, v21")
    a("v_lshl_add_u32 v22, v23, 4, v22")
    a("v_bfe_u32 v23, v21, 2, 2")
    a("v_lshl_add_u32 v22, v23, 1, v22")
    a("v_and_b32 v23, 1, v19")
    a("v_add_u32 v22, v22, v23")
    a("v_lshrrev_b32 v23, 1, v19")
    a("v_lshl_add_u32 v22, v23, 3, v22")
    a("v_lshlrev_b32 v22, 1, v22")
    a("s_mov_b32 s64, s36"); a("s_mov_b32 s65, s37"); a("s_mov_b32 s66, 1280"); a("s_mov_b32 s67, 0x20000")
    a("s_sub_u32 s10, 3, s9")
    a("v_cmp_gt_u32 vcc, s10, v0")
    a("s_and_saveexec_b64 s[12:13], vcc")
    a("buffer_store_short v16, v22, s[64:67], 0 offen")
    a("s_mov_b64 exec, s[12:13]")
    a("L_done:")
    if stamps:
        a("s_memrealtime s[100:101]") if False else None
        a("s_waitcnt lgkmcnt(0) vmcnt(0)")
        a("s_memrealtime s[82:83]")
        a("s_waitcnt lgkmcnt(0)")
        a("s_lshl_b32 s8, s2, 3")
        a("s_add_u32 s8, s8, s3")
        a("s_lshl_b32 s8, s8, 7")
        a(f"s_add_u32 s8, s8, {WS_STAMP}")
        a("s_add_u32 s40, s40, s8"); a("s_addc_u32 s41, s41, 0")
        a("v_mov_b32 v1, 0")
        for i in range(4):
            for j in range(4): a(f"v_mov_b32 v{4+j}, s{84+4*i+j}")
            a(f"global_store_dwordx4 v1, v[4:7], s[40:41] offset:{16*i}")
        a("v_mov_b32 v4, s82"); a("v_mov_b32 v5, s83"); a("v_mov_b32 v6, s78"); a("v_mov_b32 v7, 0")
        a("global_store_dwordx4 v1, v[4:7], s[40:41] offset:64")
    a("L_end:")
    a("s_endpgm")
    return wrap(a.text(), 256, 512, LDS_SIZE, 256, 102)

if __name__ == "__main__":
    open("k1.s", "w").write(gen())
    open("k1_st.s", "w").write(gen(stamps=True))
```

```python
import sys
from gen import *

WS_GEN = 0
WS_QP  = 0x1000
WS_OP  = 0x50000
WS_WP  = 0xA0000
WS_HP  = 0x100000
WS_SIZE = WS_HP + 8 * 4096
WS_STAMP = 0x4000000
L_Q = 0
L_T = 384
L_M = 512
L_RED = 1024
L_HP = 9216
L_Y = 9280
L_PAR = 9472
LDS_SIZE = 18944

DPP = "row_mask:0xf bank_mask:0xf"

def gen(stamps=None, NV0=3, spin_limit=1 << 20, xcdmap=True, fast=True, pretouch=True, barA=True):
    a = Asm()
    slots = {n: i for i, n in enumerate(stamps)} if stamps else {}
    def stamp(n):
        if n in slots:
            i = slots[n]
            a(f"s_memrealtime s[{84+2*i}:{85+2*i}]")
    VOFF = "v1"
    KB, VB = 64, 160
    sK, sV, sWS, sX, sA, sB = "s[44:47]", "s[48:51]", "s[52:55]", "s[56:59]", "s[60:63]", "s[64:67]"
    TAG = "s80"
    def reduce_hi(v, t, op="v_add_f32"):
        a(f"{op}_dpp {v}, {v}, {v} row_ror:8 {DPP}")
        a(f"v_mov_b32 {t}, {v}")
        a(f"v_permlane16_swap_b32 {t}, {v}")
        a(f"{op} {v}, {t}, {v}")
        a(f"v_mov_b32 {t}, {v}")
        a(f"v_permlane32_swap_b32 {t}, {v}")
        a(f"{op} {v}, {t}, {v}")
    def sum_to_sgpr(pairs):
        for m in ("row_shr:1", "row_shr:2", "row_shr:4", "row_shr:8"):
            for v, s in pairs: a(f"v_add_f32_dpp {v}, {v}, {v} {m} {DPP} bound_ctrl:0")
        for v, s in pairs: a(f"v_add_f32_dpp {v}, {v}, {v} row_bcast:15 row_mask:0xa bank_mask:0xf")
        for v, s in pairs: a(f"v_add_f32_dpp {v}, {v}, {v} row_bcast:31 row_mask:0xc bank_mask:0xf")
        for v, s in pairs: a(f"v_readlane_b32 {s}, {v}, 63")
    def reduce8(base):
        for j in range(4): a(f"v_permlane32_swap_b32 v{base+j}, v{base+j+4}")
        for j in range(4): a(f"v_add_f32 v{base+j}, v{base+j}, v{base+j+4}")
        for j in range(2): a(f"v_permlane16_swap_b32 v{base+j}, v{base+j+2}")
        for j in range(2): a(f"v_add_f32 v{base+j}, v{base+j}, v{base+j+2}")
        for j in range(2): a(f"v_add_f32_dpp v{base+j}, v{base+j}, v{base+j} row_ror:8 {DPP}")
    def embed(base, tagv):
        for i in range(4): a(f"v_perm_b32 v{base+i}, v{base+i}, {tagv}, s{72+i}")
    def check(base, t0, t1, dst):
        a(f"v_perm_b32 {t0}, v{base+1}, v{base}, s76")
        a(f"v_perm_b32 {t1}, v{base+3}, v{base+2}, s77")
        a(f"v_or_b32 {t0}, {t0}, {t1}")
        a(f"v_cmp_eq_u32 {dst}, {TAG}, {t0}")
    def strip(base, n=4):
        for i in range(n): a(f"v_and_b32 v{base+i}, 0xffffff00, v{base+i}")
    def rnd_pair(d0, d1, s0, s1, t):
        a(f"v_cvt_pk_bf16_f32 {t}, {s0}, {s1}")
        a(f"v_lshlrev_b32 {d0}, 16, {t}")
        a(f"v_and_b32 {d1}, 0xffff0000, {t}")
    def rnd1(d, s):
        a(f"v_cvt_pk_bf16_f32 {d}, {s}, {s}")
        a(f"v_and_b32 {d}, 0xffff0000, {d}")
    def spin_guard(lbl_retry):
        a("s_sub_u32 s78, s78, 1")
        a("s_cmp_eq_u32 s78, 0")
        a(f"s_cbranch_scc0 {lbl_retry}")
    def ln_scalars(s1, s2, vm, vr, t):
        a(f"v_mov_b32 {vr}, 0x3acccccd")
        a(f"v_mul_f32 {vm}, {s1}, {vr}")
        a(f"v_mul_f32 {vr}, {s2}, {vr}")
        a(f"v_fma_f32 {vr}, -{vm}, {vm}, {vr}")
        a(f"v_max_f32 {vr}, 0, {vr}")
        a(f"v_cvt_pk_bf16_f32 {t}, {vm}, {vr}")
        a(f"v_lshlrev_b32 {vm}, 16, {t}")
        a(f"v_and_b32 {vr}, 0xffff0000, {t}")
        a(f"v_add_f32 {vr}, 0x3727c5ac, {vr}")
        rnd1(vr, vr)
        a(f"v_sqrt_f32 {vr}, {vr}")
        rnd1(vr, vr)
        a(f"v_rcp_f32 {vr}, {vr}")
    def tag_from_gen():
        a("v_readfirstlane_b32 s79, v4")
        a("s_add_u32 s79, s79, 1")
        a("s_and_b32 s79, s79, 0xff")
        a("s_mul_i32 s80, s79, 0x01010101")
        a("s_xor_b32 s80, s80, 0xffaa5500")
    def tile_loads(base, srd, t0, t1):
        last_so = None
        for t in range(t0, t1):
            for s in range(3):
                off = t * 3072 + s * 128
                so = off // 4096 * 4096
                r = base + (t * 3 + s) * 4
                if so != last_so:
                    a(f"s_mov_b32 s8, {so}"); last_so = so
                a(f"buffer_load_dwordx4 v[{r}:{r+3}], {VOFF}, {srd}, s8 offen offset:{off-so} nt")

    if stamps:
        for i in range(84, 100): a(f"s_mov_b32 s{i}, 0")
    stamp("start")
    a("s_load_dwordx16 s[16:31], s[0:1], 0")
    a("s_load_dwordx8 s[32:39], s[0:1], 64")
    a("s_load_dwordx2 s[40:41], s[0:1], 96")
    a("s_cmp_ge_u32 s2, 256")
    a("s_cbranch_scc1 L_end")
    a("v_lshrrev_b32 v1, 6, v0")
    a("v_and_b32 v0, 63, v0")
    a("v_readfirstlane_b32 s3, v1")
    if xcdmap:
        a("s_and_b32 s4, s2, 7")
        a("s_lshl_b32 s4, s4, 2")
        a("s_bfe_u32 s7, s2, 0x20003")
        a("s_add_u32 s4, s4, s7")
        a("s_lshr_b32 s5, s2, 5")
    else:
        a("s_lshr_b32 s4, s2, 3")
        a("s_and_b32 s5, s2, 7")
    a("v_lshrrev_b32 v2, 3, v0")
    a("v_and_b32 v3, 7, v0")
    a("v_mul_u32_u24 v1, 384, v2")
    a("v_lshl_add_u32 v1, v3, 4, v1")
    a("s_lshl_b32 s8, s4, 6")
    a("s_lshl_b32 s8, s8, 3")
    a("s_lshl_b32 s7, s5, 3")
    a("s_add_u32 s8, s8, s7")
    a("s_add_u32 s8, s8, s3")
    a("s_add_u32 s8, s8, 448")
    a("s_mul_i32 s8, s8, 24576")
    def common_setup():
        a("s_lshl_b32 s6, s4, 3")
        a("s_add_u32 s6, s6, s5")
        for i in range(4): a(f"s_mov_b32 s{72+i}, 0x{0x07060500+i:08x}")
        a("s_mov_b32 s76, 0x0c0c0400")
        a("s_mov_b32 s77, 0x04000c0c")
        a(f"s_mov_b32 s78, {spin_limit}")
        a("s_lshr_b32 s42, s5, 1")
        a("s_and_b32 s43, s5, 1")
        a("s_min_u32 s13, s2, 159")
        a("s_cmp_ge_u32 s13, 80")
        a("s_cselect_b32 s14, 1, 0")
        a("s_mul_i32 s12, s14, 80")
        a("s_sub_u32 s12, s13, s12")
        a("s_mul_i32 s68, s14, 320")
        a("s_lshr_b32 s69, s12, 4")
        a("s_lshl_b32 s69, s69, 6")
        a("s_add_u32 s68, s68, s69")
        a("s_and_b32 s69, s12, 3")
        a("s_lshl_b32 s69, s69, 4")
        a("s_add_u32 s68, s68, s69")
        a("s_bfe_u32 s69, s12, 0x20002")
        a("s_lshl_b32 s69, s69, 1")
        a("s_add_u32 s68, s68, s69")
        a("s_lshl_b32 s68, s68, 1")
    def srd_ws():
        a("s_mov_b32 s52, s40"); a("s_mov_b32 s53, s41"); a(f"s_mov_b32 s54, {WS_SIZE}"); a("s_mov_b32 s55, 0x20000")
    def srd_x():
        a("s_mov_b32 s56, s16"); a("s_mov_b32 s57, s17"); a("s_mov_b32 s58, 1280"); a("s_mov_b32 s59, 0x20000")
    def srd_k():
        a("s_add_u32 s44, s18, s8"); a("s_addc_u32 s45, s19, 0"); a("s_mov_b32 s46, 24576"); a("s_mov_b32 s47, 0x20000")
    def srd_v():
        a("s_add_u32 s48, s20, s8"); a("s_addc_u32 s49, s21, 0"); a("s_mov_b32 s50, 24576"); a("s_mov_b32 s51, 0x20000")
    a("s_cmp_gt_u32 s3, 4")
    a("s_cbranch_scc1 L_qproj")
    a("s_waitcnt lgkmcnt(0)")
    stamp("karg")
    srd_k(); srd_v()
    if barA: a("s_barrier")
    tile_loads(KB, sK, 0, 8)
    tile_loads(VB, sV, 0, NV0)
    common_setup(); srd_ws(); srd_x()
    a("s_cmp_eq_u32 s3, 0")
    a("s_cbranch_scc0 L_bar0")

    a("buffer_load_dword v4, off, s[52:55], 0 sc1")
    a("s_add_u32 s9, s68, 16")
    a("s_load_dword s100, s[16:17], s68")
    a("s_load_dword s101, s[16:17], s9")
    a("s_load_dword s69, s[34:35], 0")
    if pretouch:
        a("s_mul_i32 s11, s4, 192"); a("s_mul_i32 s12, s42, 48"); a("s_add_u32 s11, s11, s12"); a("s_mul_i32 s11, s11, 1280")
        a("s_add_u32 s12, s24, s11"); a("s_addc_u32 s13, s25, 0")
        a("s_load_dword s70, s[12:13], 0")
        a("s_load_dword s71, s[28:29], 0")
        a("s_load_dword s7, s[30:31], 0")
        a("s_load_dword s14, s[32:33], 0")
        a("s_load_dword s15, s[36:37], 0")
    QB = VB + 12 * NV0
    a("v_lshlrev_b32 v5, 4, v0")
    a("v_lshrrev_b32 v6, 4, v0")
    a("v_lshlrev_b32 v6, 7, v6")
    a("v_and_b32 v7, 3, v0")
    a("v_lshl_add_u32 v6, v7, 5, v6")
    a("v_bfe_u32 v7, v0, 2, 2")
    a("v_lshl_add_u32 v8, v7, 2, v6")
    a("s_waitcnt vmcnt(0)")
    tag_from_gen()
    a("s_lshl_b32 s8, s4, 13")
    a(f"s_add_u32 s8, s8, {WS_QP}")
    a("s_add_u32 s9, s8, 4096")
    a("s_mov_b32 exec_lo, -1"); a("s_mov_b32 exec_hi, 0x1ffff")
    a("L_qpoll_retry:")
    for p in range(8):
        so = "s8" if p < 4 else "s9"
        a(f"buffer_load_dwordx4 v[{QB+4*p}:{QB+4*p+3}], v5, {sWS}, {so} offen offset:{(p%4)*1024} sc1")
    a("s_waitcnt vmcnt(0)")
    a("s_mov_b64 s[12:13], exec")
    for p in range(8):
        check(QB + 4 * p, "v6", "v7", "vcc")
        a("s_and_b64 s[12:13], s[12:13], vcc")
    a("s_cmp_eq_u64 s[12:13], exec")
    a("s_cbranch_scc1 L_qpoll_ok")
    spin_guard("L_qpoll_retry")
    a("L_qpoll_ok:")
    for p in range(8): strip(QB + 4 * p)
    a("s_getreg_b32 s10, hwreg(HW_REG_XCC_ID, 0, 4)")
    a("s_lshl_b32 s10, s10, 8")
    a("s_mov_b64 s[12:13], exec")
    for p in range(8):
        a(f"v_cmp_eq_u32 vcc, s10, v{QB+4*p}")
        a("s_and_b64 s[12:13], s[12:13], vcc")
    a("s_bfe_u32 s81, s13, 0x10010")
    if not fast: a("s_mov_b32 s81, 0")
    for p in range(1, 8):
        for e in range(0, 4, 2): a(f"v_pk_add_f32 v[{QB+e}:{QB+e+1}], v[{QB+e}:{QB+e+1}], v[{QB+4*p+e}:{QB+4*p+e+1}]")
    a(f"v_cvt_pk_bf16_f32 v{QB}, v{QB}, v{QB+1}")
    a(f"v_cvt_pk_bf16_f32 v{QB+1}, v{QB+2}, v{QB+3}")
    a("s_mov_b32 exec_hi, 0xffff")
    a(f"ds_write_b32 v8, v{QB} offset:{L_Q}")
    a(f"ds_write_b32 v8, v{QB+1} offset:{L_Q+16}")
    a("s_mov_b64 exec, 1")
    a("v_mov_b32 v6, s80"); a("v_mov_b32 v7, s81"); a("v_mov_b32 v9, 0")
    a(f"ds_write_b64 v9, v[6:7] offset:{L_T}")
    a("s_mov_b64 exec, -1")
    a("s_waitcnt lgkmcnt(0)")
    stamp("qpub")
    a("s_branch L_bar0")

    a("L_qproj:")
    a("s_setprio 3")
    a("v_lshlrev_b32 v5, 4, v0")
    a("v_mul_u32_u24 v6, 20, v2")
    a("s_mul_i32 s9, s5, 983040")
    a("s_mul_i32 s10, s4, 384")
    a("s_add_u32 s9, s9, s10")
    a("s_sub_u32 s15, s3, 5")
    a("s_lshl_b32 s10, s15, 7")
    a("s_add_u32 s9, s9, s10")
    a("v_mul_u32_u24 v7, 122880, v2")
    a("v_lshl_add_u32 v7, v3, 4, v7")
    a("s_mul_i32 s11, s5, 160")
    a("s_waitcnt lgkmcnt(0)")
    stamp("karg")
    a("s_add_u32 s60, s22, s9"); a("s_addc_u32 s61, s23, 0"); a("s_mov_b32 s62, 970880"); a("s_mov_b32 s63, 0x20000")
    srd_x()
    a(f"buffer_load_dwordx4 v[8:11], v5, {sX}, 0 offen")
    a(f"buffer_load_dwordx4 v[12:15], v5, {sX}, 0 offen offset:1024")
    a(f"buffer_load_dwordx4 v[16:19], v6, {sX}, s11 offen")
    a(f"buffer_load_dword v20, v6, {sX}, s11 offen offset:16")
    for i in range(10):
        a(f"s_mov_b32 s11, {i*12288}")
        a(f"buffer_load_dwordx4 v[{KB+4*i}:{KB+4*i+3}], v7, {sA}, s11 offen nt")
    srd_ws()
    a("buffer_load_dword v4, off, s[52:55], 0 sc1")
    G = 1
    if barA: a("s_barrier")
    srd_k(); srd_v()
    common_setup()
    stamp("barA")
    a(f"s_waitcnt vmcnt({12+G})")
    stamp("xland")
    a("v_mov_b32 v44, 0"); a("v_mov_b32 v45, 0")
    a("v_mov_b32 v46, 0x3f803f80")
    for r in range(8, 16):
        a(f"v_dot2c_f32_bf16 v44, v{r}, v46")
        a(f"v_dot2c_f32_bf16 v45, v{r}, v{r}")
    sum_to_sgpr([("v44", "s10"), ("v45", "s11")])
    ln_scalars("s10", "s11", "v44", "v46", "v45")
    stamp("lnsc")
    a(f"s_waitcnt vmcnt({10+G})")
    for i in range(5):
        a(f"v_lshlrev_b32 v{32+2*i}, 16, v{16+i}")
        a(f"v_and_b32 v{33+2*i}, 0xffff0000, v{16+i}")
    for i in range(10): a(f"v_sub_f32 v{32+i}, v{32+i}, v44")
    for i in range(0, 10, 2): rnd_pair(f"v{32+i}", f"v{33+i}", f"v{32+i}", f"v{33+i}", "v45")
    for i in range(10): a(f"v_mul_f32 v{32+i}, v{32+i}, v46")
    for i in range(10):
        a(f"v_cvt_pk_bf16_f32 v{16+i}, v{32+i}, 0")
        a(f"v_cvt_pk_bf16_f32 v{32+i}, 0, v{32+i}")
    for j in range(8): a(f"v_mov_b32 v{44+j}, 0")
    a("v_bfe_u32 v53, v0, 1, 2")
    a("v_lshrrev_b32 v54, 4, v0")
    a("v_lshl_add_u32 v53, v54, 2, v53")
    a("v_lshlrev_b32 v53, 4, v53")
    a("s_lshl_b32 s11, s6, 10")
    a(f"s_add_u32 s11, s11, {WS_QP}")
    a("s_lshl_b32 s9, s15, 8")
    a("s_add_u32 s8, s11, s9")
    stamp("prew")
    for i in range(10):
        a(f"s_waitcnt vmcnt({9+G-i})")
        for v in range(4):
            a(f"v_dot2c_f32_bf16 v{44+2*v}, v{KB+4*i+v}, v{16+i}")
            a(f"v_dot2c_f32_bf16 v{45+2*v}, v{KB+4*i+v}, v{32+i}")
    a("s_waitcnt vmcnt(0)")
    stamp("wqland")
    tag_from_gen()
    reduce8(44)
    a(f"v_mov_b32 v52, {TAG}")
    a(f"v_mov_b32_dpp v46, v44 quad_perm:[1,1,3,3] {DPP}")
    a(f"v_mov_b32_dpp v47, v45 quad_perm:[1,1,3,3] {DPP}")
    embed(44, "v52")
    a("s_mov_b32 exec_lo, 0x00550055"); a("s_mov_b32 exec_hi, 0x00550055")
    a(f"buffer_store_dwordx4 v[44:47], v53, {sWS}, s8 offen sc1")
    a("s_mov_b64 exec, -1")
    a("s_cmp_eq_u32 s3, 5")
    a("s_cbranch_scc0 L_noxcc")
    a("s_getreg_b32 s10, hwreg(HW_REG_XCC_ID, 0, 4)")
    a("s_lshl_b32 s10, s10, 8")
    for i in range(4): a(f"v_mov_b32 v{48+i}, s10")
    embed(48, "v52")
    a("s_mov_b64 exec, 1")
    a(f"buffer_store_dwordx4 v[48:51], off, {sWS}, s11 offset:768 sc1")
    a("s_mov_b64 exec, -1")
    a("L_noxcc:")
    stamp("qpub")
    a("s_setprio 0")
    tile_loads(KB, sK, 0, 8)
    tile_loads(VB, sV, 0, NV0)

    a("L_bar0:")
    a("s_nop 4")
    a("v_lshrrev_b32 v61, 4, v0")
    a("s_lshl_b32 s8, s3, 10")
    for s in range(3):
        a(f"v_add_u32 v62, {8*s}, v3")
        a("v_mul_u32_u24 v63, 43, v62")
        a("v_lshrrev_b32 v63, 8, v63")
        a("v_mul_u32_u24 v57, 6, v63")
        a("v_sub_u32 v62, v62, v57")
        a("v_lshlrev_b32 v63, 3, v63")
        a("v_lshl_add_u32 v63, v61, 1, v63")
        a("v_lshl_add_u32 v63, v63, 3, v62")
        a("v_lshlrev_b32 v63, 2, v63")
        a(f"v_add_u32 v{58+s}, s8, v63")
    a("v_lshlrev_b32 v61, 5, v0")
    a("v_add_u32 v61, s8, v61")
    a("s_mul_i32 s11, s4, 192")
    a("s_mul_i32 s12, s42, 48")
    a("s_add_u32 s11, s11, s12")
    a("s_mul_i32 s11, s11, 1280")
    a("s_mul_i32 s12, s43, 640")
    a("s_add_u32 s11, s11, s12")
    a("s_lshl_b32 s12, s3, 7")
    a("s_add_u32 s11, s11, s12")
    a("s_add_u32 s60, s24, s11"); a("s_addc_u32 s61, s25, 0"); a("s_mov_b32 s62, 0"); a("s_mov_b32 s63, 0x20000")
    a("s_mov_b32 s64, s60"); a("s_mov_b32 s65, s61"); a("s_mov_b32 s66, 0"); a("s_mov_b32 s67, 0x20000")
    a("v_mul_u32_u24 v7, 1280, v2")
    a("v_lshl_add_u32 v7, v3, 4, v7")
    a("s_mov_b32 s9, 10240")
    a("s_mov_b32 s10, 30720")
    a("v_mov_b32 v63, v7")
    a("s_cmp_eq_u32 s3, 4"); a("s_cbranch_scc0 L_p1_a")
    a(f"s_mov_b32 s62, {47*1280+128}"); a(f"s_mov_b32 s66, {47*1280+128}")
    a("s_branch L_p1_go")
    a("L_p1_a:")
    a("s_cmp_eq_u32 s3, 5"); a("s_cbranch_scc0 L_p1_b")
    a("s_mov_b32 s60, s28"); a("s_mov_b32 s61, s29"); a("s_mov_b32 s62, 3072")
    a("s_mov_b32 s64, s30"); a("s_mov_b32 s65, s31"); a("s_mov_b32 s66, 3072")
    a("s_mov_b32 s9, 1024"); a("s_mov_b32 s10, 0"); a("v_lshlrev_b32 v63, 4, v0")
    a("s_branch L_p1_go")
    a("L_p1_b:")
    a("s_cmp_eq_u32 s3, 6"); a("s_cbranch_scc0 L_p1_go")
    a("s_mov_b32 s60, s32"); a("s_mov_b32 s61, s33"); a("s_mov_b32 s62, 3072")
    a("s_mov_b32 s9, 1024"); a("s_mov_b32 s10, 0"); a("v_lshlrev_b32 v63, 4, v0")
    a("L_p1_go:")
    stamp("preb0")
    a("s_barrier")
    stamp("bar0")
    a("v_lshlrev_b32 v5, 4, v3")
    for s in range(3): a(f"ds_read_b128 v[{8+4*s}:{11+4*s}], v5 offset:{L_Q+128*s}")
    a("v_mov_b32 v57, 0")
    a(f"ds_read_b64 v[56:57], v57 offset:{L_T}")
    a("s_waitcnt lgkmcnt(0)")
    a("v_readfirstlane_b32 s80, v56")
    a("v_readfirstlane_b32 s81, v57")
    for t in range(0, 8, 2):
        a(f"v_mov_b32 v{24+t}, 0"); a(f"v_mov_b32 v{25+t}, 0")
        a(f"s_waitcnt vmcnt({3*(7-(t+1)) + 3*NV0})")
        for s in range(3):
            for v in range(4):
                a(f"v_dot2c_f32_bf16 v{24+t}, v{KB+(t*3+s)*4+v}, v{8+4*s+v}")
                a(f"v_dot2c_f32_bf16 v{25+t}, v{KB+((t+1)*3+s)*4+v}, v{8+4*s+v}")
        for m in ("quad_perm:[1,0,3,2]", "quad_perm:[2,3,0,1]", "row_half_mirror"):
            a(f"v_add_f32_dpp v{24+t}, v{24+t}, v{24+t} {m} {DPP}")
            a(f"v_add_f32_dpp v{25+t}, v{25+t}, v{25+t} {m} {DPP}")
        rnd_pair(f"v{24+t}", f"v{25+t}", f"v{24+t}", f"v{25+t}", "v56")
        a(f"v_mul_f32 v{24+t}, 0x3d93cd3a, v{24+t}")
        a(f"v_mul_f32 v{25+t}, 0x3d93cd3a, v{25+t}")
        rnd_pair(f"v{24+t}", f"v{25+t}", f"v{24+t}", f"v{25+t}", "v56")
    a("v_max3_f32 v56, v24, v25, v26")
    a("v_max3_f32 v56, v56, v27, v28")
    a("v_max3_f32 v56, v56, v29, v30")
    a("v_max_f32 v56, v56, v31")
    reduce_hi("v56", "v57", "v_max_f32")
    a("s_lshl_b32 s8, s3, 2")
    a("v_mov_b32 v57, s8")
    a("s_mov_b64 exec, 1")
    a(f"ds_write_b32 v57, v56 offset:{L_M}")
    a("s_mov_b64 exec, -1")
    a("s_mov_b32 s8, 0")
    for i in range(6):
        if i == 3: a("s_mov_b32 s8, s10")
        a(f"buffer_load_dwordx4 v[{KB+4*i}:{KB+4*i+3}], v63, {sA if i < 3 else sB}, s8 offen nt")
        if i not in (2, 5): a("s_add_u32 s8, s8, s9")
    tile_loads(VB, sV, NV0, 8)
    stamp("issV")
    for t in range(8): a(f"v_sub_f32 v{24+t}, v{24+t}, v56")
    for t in range(8): a(f"v_mul_f32 v{24+t}, 0x3fb8aa3b, v{24+t}")
    for t in range(8): a(f"v_exp_f32 v{24+t}, v{24+t}")
    for t in range(8):
        a(f"v_cvt_pk_bf16_f32 v{8+t}, v{24+t}, 0")
        a(f"v_cvt_pk_bf16_f32 v{16+t}, 0, v{24+t}")
    a("v_add_f32 v57, v24, v25")
    for t in range(2, 8): a(f"v_add_f32 v57, v57, v{24+t}")
    reduce_hi("v57", "v62")
    def merge_factor():
        a("v_mov_b32 v30, 0")
        a(f"ds_read_b128 v[24:27], v30 offset:{L_M}")
        a(f"ds_read_b128 v[28:31], v30 offset:{L_M+16}")
        a("s_waitcnt lgkmcnt(0)")
        a("v_max3_f32 v24, v24, v25, v26")
        a("v_max3_f32 v27, v27, v28, v29")
        a("v_max3_f32 v24, v24, v30, v31")
        a("v_max_f32 v24, v24, v27")
        a("v_sub_f32 v31, v56, v24")
        a("v_mul_f32 v31, 0x3fb8aa3b, v31")
        a("v_exp_f32 v31, v31")
        a("v_mov_b32 v56, v24")
    a("s_cmp_lt_u32 s3, 4")
    a("s_cbranch_scc1 L_early1")
    a("s_waitcnt lgkmcnt(0)")
    a("s_barrier")
    merge_factor()
    a("L_early1:")
    for j in range(24): a(f"v_mov_b32 v{32+j}, 0")
    for t in range(8):
        a(f"s_waitcnt vmcnt({3*(7-t) + (6 if t < NV0 else 0)})")
        for s in range(3):
            for v in range(4):
                a(f"v_dot2c_f32_bf16 v{32+8*s+2*v}, v{VB+(t*3+s)*4+v}, v{8+t}")
                a(f"v_dot2c_f32_bf16 v{33+8*s+2*v}, v{VB+(t*3+s)*4+v}, v{16+t}")
    stamp("pvend")
    for s in range(3): reduce8(32 + 8 * s)
    a("s_cmp_lt_u32 s3, 4")
    a("s_cbranch_scc0 L_late2")
    a("s_waitcnt lgkmcnt(0)")
    a("s_barrier")
    a(f"s_mov_b32 s62, {47*1280+128}")
    for i in range(6):
        a(f"s_mov_b32 s8, {i*10240}")
        a(f"buffer_load_dwordx4 v[{KB+4*i}:{KB+4*i+3}], v7, {sA}, s8 offen nt")
    merge_factor()
    a("s_branch L_pre2")
    a("L_late2:")
    a("s_cmp_eq_u32 s3, 5"); a("s_cbranch_scc0 L_late3")
    for i in range(6): a(f"ds_write_b128 v63, v[{KB+4*i}:{KB+4*i+3}] offset:{L_PAR+1024*i}")
    a("s_branch L_pre2")
    a("L_late3:")
    a("s_cmp_eq_u32 s3, 6"); a("s_cbranch_scc0 L_pre2")
    for i in range(3): a(f"ds_write_b128 v63, v[{KB+4*i}:{KB+4*i+3}] offset:{L_PAR+6144+1024*i}")
    a("L_pre2:")
    for s in range(3):
        a(f"v_mul_f32 v{32+8*s}, v{32+8*s}, v31")
        a(f"v_mul_f32 v{33+8*s}, v{33+8*s}, v31")
    a("v_mul_f32 v57, v57, v31")
    for s in range(3):
        a(f"ds_write_b32 v{58+s}, v{32+8*s} offset:{L_RED}")
        a(f"ds_write_b32 v{58+s}, v{33+8*s} offset:{L_RED+32}")
    a("s_mov_b32 exec_hi, 0")
    a(f"ds_write_b32 v61, v57 offset:{L_RED+28}")
    a("s_mov_b32 exec_hi, -1")
    a(f"v_mov_b32 v52, {TAG}")
    a("s_waitcnt lgkmcnt(0)")

    def mlp_prep():
        C1 = 0xc0135761
        C2 = 0xbdd2d3e8
        a("s_lshl_b32 s8, s3, 7")
        a("v_lshlrev_b32 v56, 1, v0")
        a("v_add_u32 v56, s8, v56")
        for pi in range(3):
            for k in range(3): a(f"ds_read_u16 v{88+3*pi+k}, v56 offset:{L_PAR+3072*pi+1024*k}")
        a(f"s_mov_b32 s70, 0x{C2:08x}"); a(f"s_mov_b32 s71, 0x{C2:08x}")
        a(f"v_mov_b32 v62, 0x{C1:08x}"); a(f"v_mov_b32 v63, 0x{C1:08x}")
        a("v_mov_b32 v4, 0")
        a("v_lshlrev_b32 v61, 2, v0")
        a("v_min_u32 v61, 12, v61")
        a("v_and_b32 v60, 1, v0")
        a("v_lshlrev_b32 v60, 1, v60")
        a("v_bfe_u32 v57, v0, 1, 1")
        a("v_lshl_add_u32 v60, v57, 4, v60")
        a("v_add_u32 v60, s68, v60")
        a("s_mov_b32 s64, s36"); a("s_mov_b32 s65, s37"); a("s_mov_b32 s66, 1280"); a("s_mov_b32 s67, 0x20000")
        a("s_waitcnt lgkmcnt(0)")
        for k in range(3):
            a(f"v_lshlrev_b32 v{64+2*k}, 16, v{88+k}")
            a(f"v_lshlrev_b32 v{65+2*k}, 16, v{91+k}")
            a(f"v_lshlrev_b32 v{72+k}, 16, v{94+k}")
        for e in range(4): a(f"v_mov_b32 v{56+e}, 0")

    a("s_barrier")
    stamp("bar2")
    a("s_cmp_eq_u32 s3, 5"); a("s_cbranch_scc1 L_publish")
    a("s_cmp_gt_u32 s3, 4"); a("s_cbranch_scc1 L_join")
    a("v_lshlrev_b32 v5, 10, v3")
    a("v_lshl_add_u32 v5, v2, 5, v5")
    a("s_lshl_b32 s8, s4, 13")
    a("s_lshl_b32 s12, s42, 8")
    a("s_add_u32 s8, s8, s12")
    a(f"s_add_u32 s8, s8, {WS_OP}")
    a("s_mul_i32 s11, s43, 80")
    a("s_lshl_b32 s12, s3, 4")
    a("s_add_u32 s11, s11, s12")
    a("s_lshl_b32 s11, s11, 11")
    a("s_lshl_b32 s12, s4, 2")
    a("s_add_u32 s12, s12, s42")
    a("s_lshl_b32 s12, s12, 4")
    a("s_add_u32 s11, s11, s12")
    a(f"s_add_u32 s11, s11, {WS_WP}")
    a("v_bfe_u32 v53, v0, 1, 2")
    a("v_lshrrev_b32 v54, 4, v0")
    a("v_lshl_add_u32 v53, v54, 2, v53")
    a("v_lshlrev_b32 v53, 11, v53")
    for j in range(8): a(f"v_mov_b32 v{32+j}, 0")
    a("s_waitcnt vmcnt(0)")
    stamp("wodone")
    a("L_opoll_retry:")
    a(f"buffer_load_dwordx4 v[8:11], v5, {sWS}, s8 offen sc1")
    a(f"buffer_load_dwordx4 v[12:15], v5, {sWS}, s8 offen offset:16 sc1")
    a("s_waitcnt vmcnt(0)")
    check(8, "v6", "v7", "s[12:13]")
    check(12, "v6", "v7", "vcc")
    a("s_and_b64 s[12:13], s[12:13], vcc")
    a("s_cmp_eq_u64 s[12:13], exec")
    a("s_cbranch_scc1 L_opoll_ok")
    spin_guard("L_opoll_retry")
    a("L_opoll_ok:")
    stamp("opoll")
    a("v_and_b32 v14, 0xffffff00, v14")
    a(f"v_max_f32_dpp v16, v14, v14 quad_perm:[1,0,3,2] {DPP}")
    strip(8, 6)
    a(f"v_max_f32_dpp v16, v16, v16 quad_perm:[2,3,0,1] {DPP}")
    a("v_and_b32 v15, 0xffffff00, v15")
    a(f"v_max_f32_dpp v16, v16, v16 row_half_mirror {DPP}")
    a("v_sub_f32 v14, v14, v16")
    a("v_mul_f32 v14, 0x3fb8aa3b, v14")
    a("v_exp_f32 v14, v14")
    for i in range(6): a(f"v_mul_f32 v{8+i}, v{8+i}, v14")
    a("v_mul_f32 v15, v15, v14")
    for m in ("quad_perm:[1,0,3,2]", "quad_perm:[2,3,0,1]", "row_half_mirror"):
        for r in (15, 8, 9, 10, 11, 12, 13):
            a(f"v_add_f32_dpp v{r}, v{r}, v{r} {m} {DPP}")
    a("v_rcp_f32 v15, v15")
    for i in range(6): a(f"v_mul_f32 v{8+i}, v{8+i}, v15")
    for i in range(6):
        a(f"v_cvt_pk_bf16_f32 v{16+i}, 0, v{8+i}")
        a(f"v_cvt_pk_bf16_f32 v{8+i}, v{8+i}, 0")
    for i in range(6):
        for v in range(4):
            a(f"v_dot2c_f32_bf16 v{32+2*v}, v{KB+4*i+v}, v{8+i}")
            a(f"v_dot2c_f32_bf16 v{33+2*v}, v{KB+4*i+v}, v{16+i}")
    reduce8(32)
    a(f"v_mov_b32_dpp v34, v32 quad_perm:[1,1,3,3] {DPP}")
    a(f"v_mov_b32_dpp v35, v33 quad_perm:[1,1,3,3] {DPP}")
    embed(32, "v52")
    a("s_mov_b32 exec_lo, 0x00550055"); a("s_mov_b32 exec_hi, 0x00550055")
    a(f"buffer_store_dwordx4 v[32:35], v53, {sWS}, s11 offen sc1")
    a("s_mov_b64 exec, -1")
    stamp("wpub")
    a("s_cmp_eq_u32 s3, 0")
    a("s_cbranch_scc0 L_join")
    a("s_cmp_ge_u32 s2, 160")
    a("s_cbranch_scc1 L_done")

    a("v_lshlrev_b32 v5, 4, v0")
    a("s_lshl_b32 s8, s2, 11")
    a(f"s_add_u32 s8, s8, {WS_WP}")
    a("v_lshlrev_b32 v12, 16, s100"); a("v_and_b32 v13, 0xffff0000, v12") if False else None
    a("v_mov_b32 v14, s100"); a("v_and_b32 v13, 0xffff0000, v14"); a("v_lshlrev_b32 v12, 16, v14")
    a("v_mov_b32 v16, s101"); a("v_and_b32 v15, 0xffff0000, v16"); a("v_lshlrev_b32 v14, 16, v16")
    a("v_lshlrev_b32 v24, 12, v0")
    a("s_lshl_b32 s11, s2, 4")
    a(f"s_add_u32 s11, s11, {WS_HP}")
    a("s_and_b32 s15, s2, 7")
    a("s_lshl_b32 s15, s15, 12")
    a(f"s_add_u32 s15, s15, {WS_HP}")
    a("v_mov_b32 v20, 0"); a("v_mov_b32 v21, 0"); a("v_mov_b32 v22, 0x3f803f80")
    a("L_rpoll_retry:")
    a(f"buffer_load_dwordx4 v[8:11], v5, {sWS}, s8 offen sc1")
    a(f"buffer_load_dwordx4 v[16:19], v5, {sWS}, s8 offen offset:1024 sc1")
    a("s_waitcnt vmcnt(0)")
    check(8, "v6", "v7", "s[12:13]")
    check(16, "v6", "v7", "vcc")
    a("s_and_b64 s[12:13], s[12:13], vcc")
    a("s_cmp_eq_u64 s[12:13], exec")
    a("s_cbranch_scc1 L_rpoll_ok")
    spin_guard("L_rpoll_retry")
    a("L_rpoll_ok:")
    stamp("rpoll")
    strip(8, 4); strip(16, 4)
    a("v_pk_add_f32 v[8:9], v[8:9], v[16:17]")
    a("v_pk_add_f32 v[10:11], v[10:11], v[18:19]")
    for m in ("quad_perm:[1,0,3,2]", "quad_perm:[2,3,0,1]", "row_half_mirror", "row_mirror"):
        for e in range(4): a(f"v_add_f32_dpp v{8+e}, v{8+e}, v{8+e} {m} {DPP}")
    for e in range(4): a(f"v_mov_b32 v{16+e}, v{8+e}")
    for e in range(4): a(f"v_permlane16_swap_b32 v{16+e}, v{8+e}")
    a("v_pk_add_f32 v[8:9], v[8:9], v[16:17]")
    a("v_pk_add_f32 v[10:11], v[10:11], v[18:19]")
    for e in range(4): a(f"v_mov_b32 v{16+e}, v{8+e}")
    for e in range(4): a(f"v_permlane32_swap_b32 v{16+e}, v{8+e}")
    a("v_pk_add_f32 v[8:9], v[8:9], v[16:17]")
    a("v_pk_add_f32 v[10:11], v[10:11], v[18:19]")
    a("v_cvt_pk_bf16_f32 v8, v8, v9")
    a("v_cvt_pk_bf16_f32 v10, v10, v11")
    a("v_lshlrev_b32 v16, 16, v8"); a("v_and_b32 v17, 0xffff0000, v8")
    a("v_lshlrev_b32 v18, 16, v10"); a("v_and_b32 v19, 0xffff0000, v10")
    a("v_pk_add_f32 v[16:17], v[16:17], v[12:13]")
    a("v_pk_add_f32 v[18:19], v[18:19], v[14:15]")
    a("v_cvt_pk_bf16_f32 v28, v16, v17")
    a("v_cvt_pk_bf16_f32 v29, v18, v19")
    a(f"v_mov_b32 v30, {TAG}"); a(f"v_mov_b32 v31, {TAG}")
    a("s_mov_b64 exec, 0xff")
    a(f"buffer_store_dwordx4 v[28:31], v24, {sWS}, s11 offen sc1")
    a("s_mov_b64 exec, -1")
    stamp("hpub")
    a("v_lshlrev_b32 v24, 16, v28"); a("v_and_b32 v25, 0xffff0000, v28")
    a("v_lshlrev_b32 v26, 16, v29"); a("v_and_b32 v27, 0xffff0000, v29")
    a("v_and_b32 v6, 3, v0")
    a("v_cmp_eq_u32 vcc, 1, v6"); a("v_cndmask_b32 v55, v24, v25, vcc")
    a("v_cmp_eq_u32 vcc, 2, v6"); a("v_cndmask_b32 v55, v55, v26, vcc")
    a("v_cmp_eq_u32 vcc, 3, v6"); a("v_cndmask_b32 v55, v55, v27, vcc")
    mlp_prep()
    a("L_hpoll_retry:")
    a(f"buffer_load_dwordx4 v[8:11], v5, {sWS}, s15 offen sc1")
    a(f"buffer_load_dwordx4 v[12:15], v5, {sWS}, s15 offen offset:1024 sc1")
    a("s_mov_b32 exec_hi, 0")
    a(f"buffer_load_dwordx4 v[16:19], v5, {sWS}, s15 offen offset:2048 sc1")
    a("s_mov_b32 exec_hi, -1")
    a("s_waitcnt vmcnt(0)")
    a(f"v_cmp_eq_u32 s[12:13], {TAG}, v10")
    a(f"v_cmp_eq_u32 vcc, {TAG}, v14")
    a("s_and_b64 s[12:13], s[12:13], vcc")
    a(f"v_cmp_eq_u32 vcc, {TAG}, v18")
    a("s_or_b32 vcc_hi, vcc_hi, -1")
    a("s_and_b64 s[12:13], s[12:13], vcc")
    a("s_cmp_eq_u64 s[12:13], exec")
    a("s_cbranch_scc1 L_hpoll_ok")
    spin_guard("L_hpoll_retry")
    a("L_hpoll_ok:")
    stamp("hpoll")
    a("s_mov_b32 exec_lo, 0")
    a("v_mov_b32 v16, 0"); a("v_mov_b32 v17, 0")
    a("s_mov_b32 exec_lo, -1")
    P = [8, 9, 12, 13, 16, 17]
    for r in P:
        a(f"v_dot2c_f32_bf16 v20, v{r}, v22")
        a(f"v_dot2c_f32_bf16 v21, v{r}, v{r}")
    for i, r in enumerate(P):
        a(f"v_lshlrev_b32 v{32+2*i}, 16, v{r}")
        a(f"v_and_b32 v{33+2*i}, 0xffff0000, v{r}")
    sum_to_sgpr([("v20", "s10"), ("v21", "s11")])
    ln_scalars("s10", "s11", "v20", "v21", "v23")
    a("v_sub_f32 v23, 0, v20")
    a("v_mov_b32 v18, v23"); a("v_mov_b32 v19, v23")
    for i in range(6): a(f"v_pk_add_f32 v[{32+2*i}:{33+2*i}], v[{32+2*i}:{33+2*i}], v[18:19]")
    a("v_pk_add_f32 v[24:25], v[24:25], v[18:19]")
    a("v_pk_add_f32 v[26:27], v[26:27], v[18:19]")
    for i in range(6): a(f"v_cvt_pk_bf16_f32 v{44+i}, v{32+2*i}, v{33+2*i}")
    a("v_cvt_pk_bf16_f32 v50, v24, v25"); a("v_cvt_pk_bf16_f32 v51, v26, v27")
    for i in range(6):
        a(f"v_lshlrev_b32 v{32+2*i}, 16, v{44+i}")
        a(f"v_and_b32 v{33+2*i}, 0xffff0000, v{44+i}")
    a("v_lshlrev_b32 v24, 16, v50"); a("v_and_b32 v25, 0xffff0000, v50")
    a("v_lshlrev_b32 v26, 16, v51"); a("v_and_b32 v27, 0xffff0000, v51")
    for i in range(6): a(f"v_pk_mul_f32 v[{32+2*i}:{33+2*i}], v[{32+2*i}:{33+2*i}], v[20:21] op_sel:[0,1] op_sel_hi:[1,1]")
    a("v_pk_mul_f32 v[24:25], v[24:25], v[20:21] op_sel:[0,1] op_sel_hi:[1,1]")
    a("v_pk_mul_f32 v[26:27], v[26:27], v[20:21] op_sel:[0,1] op_sel_hi:[1,1]")
    for i in range(6): a(f"v_cvt_pk_bf16_f32 v{44+i}, v{32+2*i}, v{33+2*i}")
    a("v_cvt_pk_bf16_f32 v50, v24, v25"); a("v_cvt_pk_bf16_f32 v51, v26, v27")
    a("s_mov_b32 exec_lo, 0")
    a("v_mov_b32 v48, 0"); a("v_mov_b32 v49, 0")
    a("s_mov_b32 exec_lo, -1")
    a("v_mov_b32 v20, 0"); a("v_mov_b32 v21, 0")
    for i in range(6):
        a(f"v_dot2c_f32_bf16 v20, v{44+i}, v22")
        a(f"v_dot2c_f32_bf16 v21, v{44+i}, v{44+i}")
    a("v_lshlrev_b32 v24, 16, v50"); a("v_and_b32 v25, 0xffff0000, v50")
    a("v_lshlrev_b32 v26, 16, v51"); a("v_and_b32 v27, 0xffff0000, v51")
    sum_to_sgpr([("v20", "s10"), ("v21", "s11")])
    ln_scalars("s10", "s11", "v20", "v21", "v23")
    for e in range(4): a(f"v_sub_f32 v{24+e}, v{24+e}, v20")
    rnd_pair("v24", "v25", "v24", "v25", "v23"); rnd_pair("v26", "v27", "v26", "v27", "v19")
    for e in range(4): a(f"v_mul_f32 v{24+e}, v{24+e}, v21")
    rnd_pair("v24", "v25", "v24", "v25", "v23"); rnd_pair("v26", "v27", "v26", "v27", "v19")
    a("v_mov_b32 v23, 0")
    a("s_mov_b64 exec, 1")
    a(f"ds_write_b128 v23, v[24:27] offset:{L_HP}")
    a("s_mov_b64 exec, -1")
    a("s_cmp_eq_u32 s2, 0")
    a("s_cbranch_scc0 L_nogen")
    a("v_mov_b32 v6, s79")
    a("s_mov_b64 exec, 1")
    a(f"buffer_store_dword v6, off, {sWS}, 0 sc1")
    a("s_mov_b64 exec, -1")
    a("L_nogen:")
    stamp("lnend")
    a("s_branch L_mlp")

    a("L_publish:")
    a("v_lshlrev_b32 v5, 4, v0")
    for w in range(8): a(f"ds_read_b128 v[{8+4*w}:{11+4*w}], v5 offset:{L_RED+1024*w}")
    a("v_and_b32 v6, 1, v0")
    a("v_cmp_eq_u32 vcc, 1, v6")
    a("s_lshl_b32 s8, s6, 10")
    a(f"s_add_u32 s8, s8, {WS_OP}")
    for w in range(1, 8):
        a(f"s_waitcnt lgkmcnt({7-w})")
        a(f"v_pk_add_f32 v[8:9], v[8:9], v[{8+4*w}:{9+4*w}]")
        a(f"v_pk_add_f32 v[10:11], v[10:11], v[{10+4*w}:{11+4*w}]")
    a("v_cndmask_b32 v10, v10, v56, vcc")
    embed(8, "v52")
    a("s_cmp_eq_u32 s81, 1")
    a("s_cbranch_scc1 L_pub_fast")
    a(f"buffer_store_dwordx4 v[8:11], v5, {sWS}, s8 offen sc1")
    a("s_branch L_pub_done")
    a("L_pub_fast:")
    a(f"buffer_store_dwordx4 v[8:11], v5, {sWS}, s8 offen")
    a("L_pub_done:")
    stamp("opub")
    a("L_join:")
    a("s_cmp_ge_u32 s2, 160")
    a("s_cbranch_scc1 L_done")
    mlp_prep()
    a("L_mlp:")
    a("s_waitcnt lgkmcnt(0)")
    a("s_barrier")
    stamp("bar3")
    a(f"ds_read_b128 v[8:11], v4 offset:{L_HP}")
    a("s_waitcnt lgkmcnt(0)")
    items = [(k, p) for k in range(3) for p in range(2)]
    def U(i): return f"v[{16+2*i}:{17+2*i}]"
    def T(i): return f"v[{28+2*i}:{29+2*i}]"
    for i, (k, p) in enumerate(items):
        a(f"v_pk_mul_f32 {U(i)}, v[{8+2*p}:{9+2*p}], v[{64+2*k}:{65+2*k}] op_sel_hi:[1,0]")
    def rnd_all():
        for i in range(6): a(f"v_cvt_pk_bf16_f32 v{76+i}, v{16+2*i}, v{17+2*i}")
        for i in range(6):
            a(f"v_lshlrev_b32 v{16+2*i}, 16, v{76+i}")
            a(f"v_and_b32 v{17+2*i}, 0xffff0000, v{76+i}")
    rnd_all()
    for i, (k, p) in enumerate(items):
        a(f"v_pk_add_f32 {U(i)}, {U(i)}, v[{64+2*k}:{65+2*k}] op_sel:[0,1] op_sel_hi:[1,1]")
    rnd_all()
    for i in range(6): a(f"v_pk_mul_f32 {T(i)}, {U(i)}, {U(i)}")
    for i in range(6): a(f"v_pk_fma_f32 {T(i)}, {T(i)}, s[70:71], v[62:63]")
    for i in range(6): a(f"v_pk_mul_f32 {T(i)}, {T(i)}, {U(i)}")
    for i in range(12): a(f"v_exp_f32 v{28+i}, v{28+i}")
    for i in range(6): a(f"v_pk_add_f32 {T(i)}, {T(i)}, 1.0 op_sel_hi:[1,0]")
    for i in range(12): a(f"v_rcp_f32 v{28+i}, v{28+i}")
    for i in range(6): a(f"v_pk_mul_f32 {U(i)}, {U(i)}, {T(i)}")
    for i in range(6): a(f"v_cvt_pk_bf16_f32 v{76+i}, v{16+2*i}, v{17+2*i}")
    for i, (k, p) in enumerate(items):
        a(f"v_dot2c_f32_bf16 v{56+2*p}, v{76+i}, v{94+k}")
        a(f"v_dot2c_f32_bf16 v{57+2*p}, v{76+i}, v{72+k}")
    for m in ("row_shr:1", "row_shr:2", "row_shr:4", "row_shr:8"):
        for e in range(4): a(f"v_add_f32_dpp v{56+e}, v{56+e}, v{56+e} {m} {DPP} bound_ctrl:0")
    for e in range(4): a(f"v_add_f32_dpp v{56+e}, v{56+e}, v{56+e} row_bcast:15 row_mask:0xa bank_mask:0xf")
    for e in range(4): a(f"v_add_f32_dpp v{56+e}, v{56+e}, v{56+e} row_bcast:31 row_mask:0xc bank_mask:0xf")
    a("s_lshl_b32 s11, s3, 4")
    a("v_mov_b32 v7, s11")
    a("s_mov_b32 exec_lo, 0"); a("s_mov_b32 exec_hi, 0x80000000")
    a(f"ds_write_b128 v7, v[56:59] offset:{L_Y}")
    a("s_mov_b64 exec, -1")
    a("s_waitcnt lgkmcnt(0)")
    stamp("mlpend")
    a("s_barrier")
    a("s_cmp_eq_u32 s3, 0")
    a("s_cbranch_scc0 L_done")
    for w in range(8): a(f"ds_read_b32 v{16+w}, v61 offset:{L_Y+16*w}")
    a("s_lshl_b32 s69, s69, 16")
    a("s_waitcnt lgkmcnt(0)")
    a("v_add_f32 v16, v16, v17"); a("v_add_f32 v18, v18, v19"); a("v_add_f32 v20, v20, v21"); a("v_add_f32 v22, v22, v23")
    a("v_add_f32 v16, v16, v18"); a("v_add_f32 v20, v20, v22")
    a("v_add_f32 v16, v16, v20")
    rnd1("v16", "v16")
    a("v_add_f32 v16, s69, v16")
    rnd1("v16", "v16")
    a("v_add_f32 v16, v16, v55")
    a("v_cvt_pk_bf16_f32 v16, v16, v16")
    a("s_mov_b64 exec, 15")
    a("buffer_store_short v16, v60, s[64:67], 0 offen")
    a("L_done:")
    if stamps:
        a("s_mov_b64 exec, -1")
        a("s_waitcnt lgkmcnt(0) vmcnt(0)")
        a("s_memrealtime s[82:83]")
        a("s_waitcnt lgkmcnt(0)")
        a("s_lshl_b32 s8, s2, 3")
        a("s_add_u32 s8, s8, s3")
        a("s_lshl_b32 s8, s8, 7")
        a(f"s_add_u32 s8, s8, {WS_STAMP}")
        a("s_add_u32 s40, s40, s8"); a("s_addc_u32 s41, s41, 0")
        a("v_mov_b32 v1, 0")
        for i in range(4):
            for j in range(4): a(f"v_mov_b32 v{4+j}, s{84+4*i+j}")
            a(f"global_store_dwordx4 v1, v[4:7], s[40:41] offset:{16*i}")
        a("v_mov_b32 v4, s82"); a("v_mov_b32 v5, s83"); a("v_mov_b32 v6, s78"); a("v_mov_b32 v7, s81")
        a("global_store_dwordx4 v1, v[4:7], s[40:41] offset:64")
    a("L_end:")
    a("s_endpgm")
    return wrap(a.text(), 256, 512, LDS_SIZE, 256, 102)

SETS = {
  "E": ["start", "qpub", "bar0", "issV", "pvend", "wodone", "opoll", "wpub"],
  "B": ["start", "bar2", "opub", "opoll", "wpub", "rpoll", "hpub", "hpoll"],
  "C": ["start", "hpoll", "lnend", "bar3", "mlpend", "wpub", "pvend", "bar2"],
}
SHOW_E = [("qpub",[5,6,7]),("qpub",[0]),("bar0",[0]),("issV",[0,1,2,3]),("issV",[4,5,6,7]),("pvend",[0,1,2,3]),("pvend",[4,5,6,7]),("wodone",[0,1,2,3,4]),("opoll",[0,1,2,3,4]),("wpub",[0,1,2,3,4]),("end",[0])]
SETS["T"] = ["start", "pvend", "bar2", "opub", "wodone", "opoll", "wpub", "rpoll"]
SHOW_T = [("pvend",[4,5,6,7]),("bar2",[0]),("opub",[5]),("wodone",[0,1,2,3,4]),("opoll",[0,1,2,3,4]),("wpub",[0,1,2,3,4]),("rpoll",[0]),("end",[0])]
SHOW_B = [("bar2",[0]),("opub",[5]),("opoll",[0,1,2,3,4]),("wpub",[0,1,2,3,4]),("rpoll",[0]),("hpub",[0]),("hpoll",[0]),("end",[0])]
SHOW_C = [("pvend",[4,5,6,7]),("bar2",[0]),("wpub",[0,1,2,3,4]),("hpoll",[0]),("lnend",[0]),("bar3",[0]),("mlpend",[0,1,2,3]),("mlpend",[4,5,6,7]),("end",[0])]
E = SETS["E"]
SETS["Q"] = ["start", "karg", "barA", "xland", "lnsc", "prew", "wqland", "qpub"]
SHOW_Q = [("karg",[5,6,7]),("barA",[5,6,7]),("xland",[5,6,7]),("lnsc",[5,6,7]),("prew",[5,6,7]),("wqland",[5,6,7]),("qpub",[5,6,7])]
VARIANTS = {
  "Q": (dict(stamps=SETS["Q"]), SHOW_Q),
  "base": (dict(stamps=E), SHOW_E),
  "barA": (dict(stamps=E, barA=True), SHOW_E),
  "nopre": (dict(stamps=E, pretouch=False), SHOW_E),
  "nv2": (dict(stamps=E, NV0=2), SHOW_E),
  "nv4": (dict(stamps=E, NV0=4), SHOW_E),
  "B": (dict(stamps=SETS["B"]), SHOW_B),
  "T": (dict(stamps=SETS["T"]), SHOW_T),
  "C": (dict(stamps=SETS["C"]), SHOW_C),
  "nostamp": (dict(), []),
}
if __name__ == "__main__":
    open("k6.s", "w").write(gen())
```
